```python
import torch

def _softmax(x, axis=-1):
    return torch.softmax(x, dim=axis)
def _gelu(x):
    return torch.nn.functional.gelu(x, approximate="tanh")
def _silu(x):
    return torch.nn.functional.silu(x)
def _sigmoid(x):
    return torch.sigmoid(x)
def _layernorm(x, axis=-1, eps=1e-5):
    m = x.mean(dim=axis, keepdim=True)
    v = x.var(dim=axis, keepdim=True, unbiased=False)
    return (x - m) / torch.sqrt(v + eps)
def _scatter_add(tgt, idx, src, axis=0):
    return tgt.clone().index_add_(axis, idx, src)
def _segment_sum(src, seg, n):
    out = torch.zeros((n,) + src.shape[1:], dtype=src.dtype)
    return out.index_add_(0, seg, src)
def _pad(x, pw):
    flat = tuple(v for pair in reversed(pw) for v in pair)
    return torch.nn.functional.pad(x, flat)

kernel_name = 'gated_mix__ssm_conv_s4__linear_attn_block__prompt'

def setup_inputs():

    _w = (lambda a: (lambda t: t.to(torch.bfloat16) if t.is_floating_point() else t)(torch.as_tensor(a)))
    def _A_setup():
        B, L, D, N = 1, 2048, 1024, 128
        A_re = -(lambda _x: torch.exp(torch.as_tensor(_x)))((lambda *s: torch.randn(*s, dtype=torch.bfloat16) * 3.2)(D, N))
        A_im = torch.pi * (lambda *s: torch.randn(*s, dtype=torch.bfloat16) * 0.05)(D, N)
        B_re = (lambda *s: torch.randn(*s, dtype=torch.bfloat16) * 0.2)(D, N)
        B_im = (lambda *s: torch.randn(*s, dtype=torch.bfloat16) * 0.2)(D, N)
        C_re = (lambda *s: torch.randn(*s, dtype=torch.bfloat16) * 0.2)(D, N)
        C_im = (lambda *s: torch.randn(*s, dtype=torch.bfloat16) * 0.2)(D, N)
        log_dt = (lambda *s: torch.randn(*s, dtype=torch.bfloat16) * 0.05)(D) * 0.5 - 4.0
        Dskip = (lambda *s: torch.randn(*s, dtype=torch.bfloat16) * 0.1)(D)
        return {
            "u": _w((lambda *s: torch.randn(*s, dtype=torch.bfloat16) * 0.05)(B, L, D)),
            "A_re": _w(A_re),
            "A_im": _w(A_im),
            "B_re": _w(B_re),
            "B_im": _w(B_im),
            "C_re": _w(C_re),
            "C_im": _w(C_im),
            "log_dt": _w(log_dt),
            "Dskip": _w(Dskip),
        }
    _A_in = _A_setup()

    def _B_setup():
        B, S, D = 1, 2048, 1024
        return {
            "x": _w((lambda *s: torch.randn(*s, dtype=torch.bfloat16) * 0.05)(B, S, D)),
            "wqkv": _w((lambda *s: torch.randn(*s, dtype=torch.bfloat16) * 0.8)(D, 3 * D)),
            "wo": _w((lambda *s: torch.randn(*s, dtype=torch.bfloat16) * 0.05)(D, D)),
        }
    _B_in = _B_setup()

    return {
        "A_u": _A_in["u"],
        "A_A_re": _A_in["A_re"],
        "A_A_im": _A_in["A_im"],
        "A_B_re": _A_in["B_re"],
        "A_B_im": _A_in["B_im"],
        "A_C_re": _A_in["C_re"],
        "A_C_im": _A_in["C_im"],
        "A_log_dt": _A_in["log_dt"],
        "A_Dskip": _A_in["Dskip"],
        "B_x": _B_in["x"],
        "B_wqkv": _B_in["wqkv"],
        "B_wo": _B_in["wo"],
        "gate_w": _w((lambda *s: torch.randn(*s, dtype=torch.bfloat16) * 0.05)(1024) * 16.0),
    }

def reference(A_u, A_A_re, A_A_im, A_B_re, A_B_im, A_C_re, A_C_im, A_log_dt, A_Dskip, B_x, B_wqkv, B_wo, gate_w):
    def _A_ref(u, A_re, A_im, B_re, B_im, C_re, C_im, log_dt, Dskip):
        Bsz, L, D = u.shape
        dt = torch.exp(log_dt)[:, None]
        A = A_re + 1j * A_im
        Bc = B_re + 1j * B_im
        Cc = C_re + 1j * C_im
        logdA = dt * A
        dB = dt * Bc
        l = (lambda x, dt: x.to(dt))(torch.arange(L), A_re.dtype)
        P = torch.exp(logdA[:, :, None] * l[None, None, :])
        K = torch.einsum("dn,dnl,dn->dl", Cc, P, dB).real
        L2 = 2 * L
        Kp = _pad(K, ((0, 0), (0, L)))
        up = (lambda x, *d: x.permute(*d))(u, 0, 2, 1)
        up = _pad(up, ((0, 0), (0, 0), (0, L)))
        Kf = (lambda x, axes=(-2,-1): torch.fft.rfft2(x.float(), dim=axes))(Kp[:, None, :], axes=(-2, -1))
        Uf = (lambda x, axes=(-2,-1): torch.fft.rfft2(x.float(), dim=axes))(up[:, :, None, :], axes=(-2, -1))
        Yf = Uf * Kf[None, :, :, :]
        y = (lambda x, s, axes=(-2,-1): torch.fft.irfft2(x, s=s, dim=axes).to(torch.bfloat16))(Yf, (1, L2), axes=(-2, -1))[:, :, 0, :L]
        y = (lambda x, *d: x.permute(*d))(y, 0, 2, 1) + u * Dskip[None, None, :]
        return y

    def _B_ref(x, wqkv, wo):
        B, S, D = x.shape
        H = 32; Dh = D // H
        qkv = (lambda x, *d: x.permute(*d))((x @ wqkv).reshape(B, S, 3, H, Dh), 2, 0, 3, 1, 4)
        q, k, v = qkv[0], qkv[1], qkv[2]
        phi = lambda t: torch.where(t > 0, t + 1, torch.exp(t)) + 1e-6
        pq, pk = phi(q), phi(k)
        kv = torch.einsum("bhsd,bhse->bhde", pk, v)
        z = torch.einsum("bhsd->bhd", pk)
        num = torch.einsum("bhqd,bhde->bhqe", pq, kv)
        den = torch.einsum("bhqd,bhd->bhq", pq, z)[..., None] + 1e-6
        o = num / den
        return (lambda x, *d: x.permute(*d))(o, 0, 2, 1, 3).reshape(B, S, D) @ wo

    x = A_u
    g = _sigmoid((x * gate_w).sum(-1, keepdims=True))
    a = _A_ref(x, A_A_re, A_A_im, A_B_re, A_B_im, A_C_re, A_C_im, A_log_dt, A_Dskip)
    b = _B_ref(x, B_wqkv, B_wo)
    return g * a + (1 - g) * b
```

```python
import sys
out=[]
def E(s): out.append(s)
lab=[0]
def L(p='L'):
    lab[0]+=1; return f"{p}_{lab[0]}"
WS_PQ=0; WS_KVP=4<<20; WS_KREV=6<<20; WS_A=10<<20; WS_KVT=14<<20; WS_G=15<<20; WS_SZ=16<<20
NAME='gated_mix__ssm_conv_s4__linear_attn_block__prompt'
def srd(d,ptr,size):
    E(f"s_mov_b32 s{d}, s{ptr}"); E(f"s_and_b32 s{d+1}, s{ptr+1}, 0xffff"); E(f"s_mov_b32 s{d+2}, {size}"); E(f"s_mov_b32 s{d+3}, 0x20000")
def head(name):
    E(f".globl {name}"); E(".p2align 8"); E(f".type {name},@function"); E(f"{name}:")
LOG2E="0x3fb8aa3b"; INV2PI="0x3e22f983"
def bf16round(dst,src,tmp):
    E(f"v_bfe_u32 v{tmp}, v{src}, 16, 1"); E(f"v_add3_u32 v{dst}, v{src}, v{tmp}, s60"); E(f"v_and_b32 v{dst}, 0xffff0000, v{dst}")

def k1():
    head("k1_kernel")
    E("s_cmp_ge_u32 s2, 512"); E("s_cbranch_scc1 K1_END")
    E("s_load_dwordx16 s[24:39], s[0:1], 0")
    E("s_load_dwordx2 s[40:41], s[0:1], 80")
    E("s_load_dwordx2 s[42:43], s[0:1], 120")
    E("s_mov_b32 s60, 0x7fff")
    E("v_and_b32 v1, 63, v0"); E("v_lshrrev_b32 v2, 6, v0"); E("s_nop 0"); E("v_readfirstlane_b32 s20, v2")
    E("s_waitcnt lgkmcnt(0)")
    srd(16,42,WS_SZ)
    E("s_cmp_ge_u32 s2, 256"); E("s_cbranch_scc1 K1_KGEN")
    srd(8,24,4<<20); srd(12,40,6<<20)
    E("s_and_b32 s21, s2, 7"); E("s_lshl_b32 s21, s21, 2"); E("s_bfe_u32 s22, s2, 0x20003"); E("s_add_u32 s21, s21, s22")
    E("s_lshr_b32 s22, s2, 5")
    for j in range(4):
        E(f"s_lshl_b32 s23, s20, 8"); E(f"s_add_u32 s23, s23, {j*64}")
        E(f"v_add_u32 v3, s23, v1")
        E(f"v_lshrrev_b32 v8, 2, v3")
        E(f"v_lshrrev_b32 v9, 4, v3"); E("v_xor_b32 v9, v9, v3"); E("v_and_b32 v9, 3, v9")
        E(f"s_lshl_b32 s23, s22, 8"); E("v_add_u32 v8, s23, v8")
        E(f"v_lshlrev_b32 v8, 11, v8"); E(f"v_lshl_add_u32 v{4+j}, v9, 4, v8")
    E("s_cmp_eq_u32 s20, 3"); E("s_cselect_b32 s23, 0, s20")
    E("s_lshl_b32 s44, s23, 11"); E("s_lshl_b32 s45, s21, 6"); E("s_add_u32 s44, s44, s45")
    for j in range(2):
        E(f"v_add_u32 v3, {j*64}, v1"); E("v_lshrrev_b32 v8, 2, v3"); E("v_and_b32 v9, 3, v3")
        E("v_mul_u32_u24 v8, 6144, v8"); E(f"v_lshl_add_u32 v{10+j}, v9, 4, v8"); E(f"v_add_u32 v{10+j}, s44, v{10+j}")
    E("s_lshl_b32 s46, s20, 12")
    E("s_lshl_b32 s47, s23, 11"); E("s_add_u32 s47, s47, 16384")
    E("v_and_b32 v3, 31, v1"); E("v_lshrrev_b32 v8, 5, v1")
    E("s_lshl_b32 s23, s20, 6"); E("v_add_u32 v3, s23, v3")
    E("v_bfe_u32 v9, v3, 2, 2"); E("v_xor_b32 v9, v9, v8")
    E("v_lshlrev_b32 v3, 6, v3"); E("v_lshl_add_u32 v12, v9, 4, v3")
    E("v_xor_b32 v13, 32, v12")
    E("v_lshrrev_b32 v3, 5, v1"); E("v_lshlrev_b32 v3, 3, v3"); E("v_bfe_u32 v8, v1, 2, 2"); E("v_add_u32 v3, v3, v8")
    E("v_bfe_u32 v8, v1, 4, 1"); E("v_lshlrev_b32 v8, 5, v8"); E("v_and_b32 v9, 3, v1"); E("v_lshl_add_u32 v8, v9, 3, v8")
    E("v_lshl_add_u32 v14, v3, 6, v8"); E("v_add_u32 v14, 16384, v14")
    for i in range(96): E(f"v_mov_b32 v{64+i}, 0")
    def dma(bufreg,koff):
        for j in range(4):
            E(f"s_add_u32 s48, s{bufreg}, s46"); E(f"s_add_u32 m0, s48, {j*1024}"); E("s_nop 0")
            E(f"buffer_load_dwordx4 v{4+j}, s[8:11], s{koff} offen lds")
        E(f"s_add_u32 s48, s{bufreg}, s47"); E("s_cmp_eq_u32 s20, 3"); E(f"s_cselect_b32 s48, {3*22528}, s48")
        E(f"s_mul_i32 s49, s{koff}, 3072")
        for j in range(2):
            E(f"s_add_u32 m0, s48, {j*1024}"); E("s_nop 0")
            E(f"buffer_load_dwordx4 v{10+j}, s[12:15], s49 offen lds")
    E("s_mov_b32 s50, 0"); E("s_mov_b32 s51, 0"); dma(50,51)
    E("s_mov_b32 s50, 22528"); E("s_mov_b32 s51, 64"); dma(50,51)
    E("s_mov_b32 s52, 0")
    E("s_mov_b32 s53, 0")
    E("s_mov_b32 s50, 45056")
    E("K1_LOOP:")
    E("s_waitcnt vmcnt(6)"); E("s_barrier")
    E("s_add_u32 s51, s52, 2"); E("s_min_u32 s51, s51, 31"); E("s_lshl_b32 s51, s51, 6")
    dma(50,51)
    E("v_add_u32 v15, s53, v12"); E("v_add_u32 v16, s53, v13"); E("v_add_u32 v17, s53, v14")
    def rd(q,base):
        a=15 if q==0 else 16
        E(f"ds_read_b128 v[{base}:{base+3}], v{a}"); E(f"ds_read_b128 v[{base+4}:{base+7}], v{a} offset:2048")
        for sg in range(3):
            E(f"ds_read_b64_tr_b16 v[{base+8+4*sg}:{base+9+4*sg}], v17 offset:{sg*2048+q*1024}")
            E(f"ds_read_b64_tr_b16 v[{base+10+4*sg}:{base+11+4*sg}], v17 offset:{sg*2048+q*1024+256}")
    def mm(base):
        for T in range(2):
            for sg in range(3):
                a=64+(T*3+sg)*16
                E(f"v_mfma_f32_32x32x16_bf16 v[{a}:{a+15}], v[{base+4*T}:{base+4*T+3}], v[{base+8+4*sg}:{base+11+4*sg}], v[{a}:{a+15}]")
    rd(0,20); rd(1,40)
    E("s_waitcnt lgkmcnt(8)"); mm(20); E("s_waitcnt lgkmcnt(0)"); mm(40)
    E("s_add_u32 s53, s53, 22528"); E("s_cmp_eq_u32 s53, 67584"); E("s_cselect_b32 s53, 0, s53")
    E("s_add_u32 s50, s50, 22528"); E("s_cmp_eq_u32 s50, 67584"); E("s_cselect_b32 s50, 0, s50")
    E("s_add_u32 s52, s52, 1"); E("s_cmp_lt_u32 s52, 32"); E("s_cbranch_scc1 K1_LOOP")
    E("s_waitcnt vmcnt(0)"); E("s_nop 7"); E("s_nop 7"); E("s_barrier")
    E("s_mov_b32 s61, 0x358637bd")
    for T in range(2):
        for sg in range(3):
            for r in range(16):
                x=64+(T*3+sg)*16+r
                bf16round(x,x,2)
                if sg<2:
                    E(f"v_mul_f32 v2, {LOG2E}, v{x}"); E("v_exp_f32 v2, v2"); E(f"v_add_f32 v3, 1.0, v{x}")
                    E(f"v_cmp_lt_f32 vcc, 0, v{x}"); E("s_nop 1"); E(f"v_cndmask_b32 v{x}, v2, v3, vcc")
                    bf16round(x,x,2); E(f"v_add_f32 v{x}, s61, v{x}"); bf16round(x,x,2)
    E("v_and_b32 v3, 31, v1"); E("v_lshrrev_b32 v8, 5, v1"); E("v_lshlrev_b32 v8, 8, v8")
    E("v_lshl_add_u32 v3, v3, 1, v8"); E("v_add_u32 v3, s46, v3")
    for T in range(2):
        for r in range(16):
            x=64+(T*3)*16+r
            E(f"ds_write_b16_d16_hi v3, v{x} offset:{(T*32+(r//4)*8+r%4)*64}")
    E("s_waitcnt lgkmcnt(0)")
    for it in range(4):
        E(f"v_lshlrev_b32 v3, 4, v1"); E(f"v_add_u32 v3, s46, v3"); E(f"ds_read_b128 v[20:23], v3 offset:{it*1024}")
        E(f"v_add_u32 v8, {it*64}, v1"); E("v_lshrrev_b32 v9, 2, v8"); E("v_and_b32 v8, 3, v8")
        E("s_lshl_b32 s23, s22, 8"); E("s_lshl_b32 s48, s20, 6"); E("s_add_u32 s23, s23, s48"); E("v_add_u32 v9, s23, v9")
        E("v_lshlrev_b32 v9, 11, v9"); E("v_lshl_add_u32 v9, v8, 4, v9"); E("s_lshl_b32 s23, s21, 6"); E("v_add_u32 v9, s23, v9")
        E("s_waitcnt lgkmcnt(0)"); E("buffer_store_dwordx4 v[20:23], v9, s[16:19], 0 offen"); E("s_nop 1")
    for i in range(32): E(f"v_mov_b32 v{20+i}, 0")
    for i in range(4): E(f"v_mov_b32 v{52+i}, 0x3f803f80")
    for T in range(2):
        for m in range(2):
            for i in range(4):
                kk=64+(T*3+1)*16+8*m+2*i; vv=64+(T*3+2)*16+8*m+2*i
                E(f"v_perm_b32 v{56+i}, v{kk+1}, v{kk}, s62") if False else None
                E(f"v_lshrrev_b32 v{56+i}, 16, v{kk}"); E(f"v_or_b32 v{56+i}, v{kk+1}, v{56+i}")
                E(f"v_lshrrev_b32 v{60+i}, 16, v{vv}"); E(f"v_or_b32 v{60+i}, v{vv+1}, v{60+i}")
            E("s_nop 1")
            E("v_mfma_f32_32x32x16_bf16 v[20:35], v[56:59], v[60:63], v[20:35]")
            E("v_mfma_f32_32x32x16_bf16 v[36:51], v[56:59], v[52:55], v[36:51]")
            E("s_nop 7")
    E("s_nop 7"); E("s_nop 7")
    E("s_barrier")
    E("s_mul_i32 s48, s20, 4352"); E("s_add_u32 s48, s48, 16384")
    E("v_and_b32 v3, 31, v1"); E("v_lshrrev_b32 v8, 5, v1"); E("v_lshlrev_b32 v8, 9, v8"); E("v_lshl_add_u32 v3, v3, 2, v8"); E("v_add_u32 v3, s48, v3")
    for r in range(16): E(f"ds_write_b32 v3, v{20+r} offset:{((r//4)*8+r%4)*128}")
    E("v_and_b32 v9, 31, v1"); E("v_cmp_eq_u32 vcc, 0, v9"); E("s_and_saveexec_b64 s[54:55], vcc")
    E("v_lshrrev_b32 v8, 5, v1"); E("v_lshlrev_b32 v8, 4, v8"); E("v_add_u32 v8, s48, v8")
    for r in range(16): E(f"ds_write_b32 v8, v{36+r} offset:{4096+((r//4)*8+r%4)*4}")
    E("s_mov_b64 exec, s[54:55]")
    E("s_waitcnt lgkmcnt(0)"); E("s_barrier")
    E("s_mul_i32 s48, s22, 32"); E("s_add_u32 s48, s48, s21"); E("s_mul_i32 s48, s48, 4224"); E(f"s_add_u32 s48, s48, {WS_KVP}")
    for i in range(5):
        E(f"v_add_u32 v3, {256*i}, v0"); E("v_cmp_gt_u32 vcc, 1056, v3"); E("s_and_saveexec_b64 s[54:55], vcc")
        E("v_lshlrev_b32 v3, 2, v3")
        for w in range(4): E(f"ds_read_b32 v{20+w}, v3 offset:{16384+w*4352}")
        E("s_waitcnt lgkmcnt(0)"); E("v_add_f32 v20, v20, v21"); E("v_add_f32 v22, v22, v23"); E("v_add_f32 v20, v20, v22")
        E("v_add_u32 v3, s48, v3"); E("buffer_store_dword v20, v3, s[16:19], 0 offen")
        E("s_mov_b64 exec, s[54:55]")
    E("s_branch K1_END")
    kgen()
    E("K1_END:"); E("s_endpgm")

def kgen():
    E("K1_KGEN:")
    E("s_sub_u32 s21, s2, 256"); E("s_lshl_b32 s21, s21, 2"); E("s_add_u32 s21, s21, s20")
    E("s_lshl_b32 s22, s21, 8")
    E("s_mul_i32 s46, s20, 16896")
    srd(8,38,2048)
    E("s_lshl_b32 s23, s21, 1"); E("v_mov_b32 v2, s23"); E("buffer_load_ushort v2, v2, s[8:11], 0 offen")
    for pi,ptr in enumerate([26,28,30,32,34,36]):
        srd(8,ptr,262144)
        for hf in range(2):
            E(f"v_lshl_add_u32 v3, v1, 1, s22"); E(f"buffer_load_ushort v{64+hf*8+pi}, v3, s[8:11], 0 offen offset:{hf*128}")
    E("s_waitcnt vmcnt(0)")
    E("v_lshlrev_b32 v2, 16, v2"); E(f"v_mul_f32 v2, {LOG2E}, v2"); E("v_exp_f32 v2, v2"); E("s_nop 0"); bf16round(2,2,3)
    for hf in range(2):
        b=64+hf*8
        for pi in range(6): E(f"v_lshlrev_b32 v{b+pi}, 16, v{b+pi}")
        E(f"v_mul_f32 v{b}, v2, v{b}"); E(f"v_mul_f32 v{b+1}, v2, v{b+1}")
        E(f"v_mul_f32 v{b+2}, v2, v{b+2}"); E(f"v_mul_f32 v{b+3}, v2, v{b+3}")
        E(f"v_mul_f32 v{b+6}, v{b+4}, v{b+2}"); E(f"v_fma_f32 v{b+6}, -v{b+5}, v{b+3}, v{b+6}")
        E(f"v_mul_f32 v{b+7}, v{b+4}, v{b+3}"); E(f"v_fma_f32 v{b+7}, v{b+5}, v{b+2}, v{b+7}")
    def dexp(dr,di,zb,Lval):
        E(f"v_mul_f32 v4, {float(Lval)}, v{zb}") if Lval in (1,2,4) else (E(f"s_mov_b32 s23, {hex(f2u(Lval))}"),E(f"v_mul_f32 v4, s23, v{zb}"))
        E(f"v_mul_f32 v5, s23, v{zb+1}") if Lval not in (1,2,4) else E(f"v_mul_f32 v5, {float(Lval)}, v{zb+1}")
        E(f"v_mul_f32 v4, {LOG2E}, v4"); E(f"v_mul_f32 v5, {INV2PI}, v5"); E("v_exp_f32 v4, v4"); E("v_fract_f32 v5, v5")
        E(f"v_cos_f32 v{dr}, v5"); E(f"v_sin_f32 v{di}, v5"); E("s_nop 0")
        E(f"v_mul_f32 v{dr}, v4, v{dr}"); E(f"v_mul_f32 v{di}, v4, v{di}")
    def cmul(dr,di,ar,ai,br,bi):
        E(f"v_mul_f32 v6, v{ar}, v{br}"); E(f"v_fma_f32 v6, -v{ai}, v{bi}, v6")
        E(f"v_mul_f32 v7, v{ar}, v{bi}"); E(f"v_fma_f32 v{di}, v{ai}, v{br}, v7"); E(f"v_mov_b32 v{dr}, v6")
    E("v_lshl_add_u32 v8, v1, 2, s46")
    E("v_and_b32 v9, 15, v1"); E("v_mul_u32_u24 v9, 528, v9"); E("v_lshrrev_b32 v3, 4, v1"); E("v_lshl_add_u32 v9, v3, 4, v9"); E("v_add_u32 v9, s46, v9")
    for bnd,(base,st,na,tb) in enumerate([(0,1,16,0),(256,2,8,256),(512,4,8,384),(1024,8,9,512)]):
        for hf in range(2):
            zb=64+hf*8
            dexp(10,11,zb,st)
            dexp(12,13,zb,16*st)
            if base:
                dexp(14,15,zb,base); cmul(14,15,14,15,zb+6,zb+7)
            else: E(f"v_mov_b32 v14, v{zb+6}"); E(f"v_mov_b32 v15, v{zb+7}")
            E("v_mov_b32 v16, 1.0"); E("v_mov_b32 v17, 0")
            for c in range(16):
                E("v_cvt_pk_bf16_f32 v18, v16, v17"); E(f"ds_write_b32 v8, v18 offset:{8448+c*528+hf*256}")
                if c<15: cmul(16,17,16,17,10,11)
            for a in range(na):
                E("v_sub_f32 v19, 0, v15"); E("v_cvt_pk_bf16_f32 v18, v14, v19"); E(f"ds_write_b32 v8, v18 offset:{a*528+hf*256}")
                if a<na-1: cmul(14,15,14,15,12,13)
        E("s_waitcnt lgkmcnt(0)")
        for i in range(4): E(f"v_mov_b32 v{20+i}, 0")
        for ks in range(8):
            E(f"ds_read_b128 v[24:27], v9 offset:{ks*64}"); E(f"ds_read_b128 v[28:31], v9 offset:{8448+ks*64}")
            E("s_waitcnt lgkmcnt(0)"); E("v_mfma_f32_16x16x32_bf16 v[20:23], v[24:27], v[28:31], v[20:23]")
        E("s_nop 7"); E("s_nop 3")
        for i in range(4): E(f"v_mov_b32 v{80+bnd*4+i}, v{20+i}")
    E("v_and_b32 v3, 15, v1"); E("v_lshrrev_b32 v4, 4, v1"); E("v_lshl_add_u32 v3, v4, 6, v3"); E("v_lshl_add_u32 v3, v3, 2, s46")
    for bnd,(tb,lim) in enumerate([(0,64),(256,32),(384,32),(512,48)]):
        E(f"v_cmp_gt_u32 vcc, {lim}, v1"); E("s_and_saveexec_b64 s[54:55], vcc")
        for r in range(4): E(f"ds_write_b32 v3, v{80+bnd*4+r} offset:{(tb+16*r)*4}")
        E("s_mov_b64 exec, s[54:55]")
    E("s_waitcnt lgkmcnt(0)")
    E("s_lshl_b32 s23, s21, 12"); E(f"s_add_u32 s23, s23, {WS_KREV}")
    def idx(dst,lreg):
        E(f"v_cvt_f32_u32 v4, v{lreg}"); bf16round(4,4,5); E("v_cvt_u32_f32 v4, v4")
        E(f"v_mov_b32 v{dst}, v4")
        for thr,sh,tb in [(256,1,256),(512,2,384),(1024,3,512)]:
            E(f"v_subrev_u32 v5, {thr}, v4"); E(f"v_lshrrev_b32 v5, {sh}, v5"); E(f"v_add_u32 v5, {tb}, v5")
            E(f"v_cmp_lt_u32 vcc, {thr}, v4"); E("s_nop 1"); E(f"v_cndmask_b32 v{dst}, v{dst}, v5, vcc")
        E(f"v_lshl_add_u32 v{dst}, v{dst}, 2, s46")
    for it in range(16):
        E(f"v_lshlrev_b32 v10, 1, v1"); E(f"v_sub_u32 v10, {2047-128*it}, v10"); E("v_add_u32 v11, -1, v10")
        idx(12,10); idx(13,11)
        E("ds_read_b32 v14, v12"); E("ds_read_b32 v15, v13"); E("s_waitcnt lgkmcnt(0)")
        E("v_cvt_pk_bf16_f32 v14, v14, v15"); E(f"v_lshl_add_u32 v16, v1, 2, s23")
        E(f"buffer_store_dword v14, v16, s[16:19], 0 offen offset:{it*256}")
import struct
def f2u(x): return struct.unpack('<I',struct.pack('<f',float(x)))[0]


def k2():
    head("k2_kernel")
    E("s_cmp_ge_u32 s2, 320"); E("s_cbranch_scc1 K2_END")
    E("s_load_dwordx2 s[24:25], s[0:1], 0"); E("s_load_dwordx2 s[26:27], s[0:1], 64"); E("s_load_dwordx2 s[28:29], s[0:1], 96"); E("s_load_dwordx2 s[42:43], s[0:1], 120")
    E("s_mov_b32 s60, 0x7fff")
    E("v_and_b32 v1, 63, v0"); E("v_lshrrev_b32 v2, 6, v0"); E("s_nop 0"); E("v_readfirstlane_b32 s20, v2")
    E("s_waitcnt lgkmcnt(0)")
    srd(16,42,WS_SZ); srd(8,24,4<<20)
    E("s_cmp_ge_u32 s2, 288"); E("s_cbranch_scc1 K2_GATE")
    E("s_cmp_ge_u32 s2, 256"); E("s_cbranch_scc1 K2_RED")
    E("s_lshl_b32 s21, s2, 2"); E("s_add_u32 s21, s21, s20")
    E("s_mul_i32 s46, s20, 40960")
    E("s_lshl_b32 s22, s21, 12"); E(f"s_add_u32 s22, s22, {WS_KREV}"); E("s_add_u32 s30, s42, s22"); E("s_addc_u32 s31, s43, 0"); srd(12,30,4096)
    for it in range(5):
        E(f"v_add_u32 v3, {it*64}, v1"); E("v_cmp_gt_u32 vcc, 260, v3"); E("s_and_saveexec_b64 s[54:55], vcc")
        E("v_lshlrev_b32 v3, 4, v3")
        E("buffer_load_dwordx4 v[20:23], v3, s[12:15], 0 offen"); E("buffer_load_dwordx4 v[24:27], v3, s[12:15], 0 offen offset:16")
        E("v_add_u32 v3, s46, v3"); E("s_waitcnt vmcnt(0)")
        for j in range(8):
            if j%2==0: E(f"ds_write_b128 v3, v[{20+j//2}:{23+j//2}] offset:{j*4160}") if (j//2)%2==0 else None
            if j%2==0 and (j//2)%2==1:
                for q in range(4): E(f"v_mov_b32 v{28+q}, v{20+j//2+q}")
                E("s_nop 0"); E(f"ds_write_b128 v3, v[28:31] offset:{j*4160}")
            if j%2==1:
                for q in range(4): E(f"v_alignbyte_b32 v{28+q}, v{20+(j+1)//2+q}, v{20+(j-1)//2+q}, 2")
                E("s_nop 0"); E(f"ds_write_b128 v3, v[28:31] offset:{j*4160}")
            E("s_waitcnt lgkmcnt(0)")
        E("s_mov_b64 exec, s[54:55]")
    for q in range(4): E(f"v_mov_b32 v{28+q}, 0")
    E("v_lshl_add_u32 v3, v1, 4, s46")
    for q in range(3):
        if q<2: E(f"ds_write_b128 v3, v[28:31] offset:{33280+q*1024}")
    E("v_cmp_gt_u32 vcc, 27, v1"); E("s_and_saveexec_b64 s[54:55], vcc"); E(f"ds_write_b128 v3, v[28:31] offset:{33280+2048}"); E("s_mov_b64 exec, s[54:55]")
    E("v_lshrrev_b32 v4, 5, v1"); E("v_mul_u32_u24 v4, 80, v4"); E("v_and_b32 v5, 31, v1"); E("v_lshl_add_u32 v4, v5, 1, v4"); E("v_add_u32 v4, s46, v4")
    E("v_lshlrev_b32 v5, 11, v1"); E("s_lshl_b32 s23, s21, 1"); E("v_add_u32 v5, s23, v5")
    for it in range(32): E(f"s_mov_b32 s23, {it*64*2048}"); E(f"buffer_load_ushort v{64+it}, v5, s[8:11], s23 offen")
    E("s_waitcnt vmcnt(0)")
    for it in range(32): E(f"ds_write_b16 v4, v{64+it} offset:{33280+(31+2*it)*80}")
    E("v_and_b32 v5, 31, v1"); E("v_lshrrev_b32 v6, 5, v1")
    E("v_mul_u32_u24 v7, 80, v5"); E("v_lshl_add_u32 v7, v6, 4, v7"); E("v_add_u32 v7, s46, v7"); E("v_add_u32 v7, 33280, v7")
    E("v_sub_u32 v8, 7, v5"); E("v_and_b32 v8, 7, v8"); E("v_mul_u32_u24 v8, 4160, v8")
    E("v_lshrrev_b32 v9, 3, v5"); E("v_sub_u32 v9, v6, v9"); E("v_add_u32 v9, 3, v9"); E("v_lshl_add_u32 v8, v9, 4, v8"); E("v_add_u32 v8, s46, v8")
    for i in range(32): E(f"v_mov_b32 v{64+i}, 0")
    E("s_waitcnt lgkmcnt(0)")
    steps=[(k,ks) for k in range(64) for ks in range(2)]
    def rd(n):
        k,ks=steps[n]; b=20+(n%3)*12
        E(f"ds_read_b128 v[{b}:{b+3}], v8 offset:{64*(63-k)+32*ks}"); E(f"ds_read_b128 v[{b+4}:{b+7}], v7 offset:{(63-k)*80+32*ks}")
        if k<32: E(f"ds_read_b128 v[{b+8}:{b+11}], v7 offset:{(31-k)*80+32*ks}")
        else: E("s_nop 0") if False else None
    cnt=lambda n: 3 if steps[n][0]<32 else 2
    rd(0); rd(1)
    for n in range(len(steps)):
        if n+2<len(steps): rd(n+2)
        pend=sum(cnt(m) for m in (n+1,n+2) if m<len(steps))
        E(f"s_waitcnt lgkmcnt({pend})"); b=20+(n%3)*12
        E(f"v_mfma_f32_32x32x16_bf16 v[80:95], v[{b}:{b+3}], v[{b+4}:{b+7}], v[80:95]")
        if steps[n][0]<32: E(f"v_mfma_f32_32x32x16_bf16 v[64:79], v[{b}:{b+3}], v[{b+8}:{b+11}], v[64:79]")
    E("s_nop 7"); E("s_nop 7")
    srd(12,26,2048); E("s_lshl_b32 s23, s21, 1"); E("v_mov_b32 v2, s23"); E("buffer_load_ushort v2, v2, s[12:15], 0 offen")
    E("v_lshlrev_b32 v10, 16, v5"); E("v_lshl_add_u32 v10, v6, 13, v10"); E("v_add_u32 v10, s23, v10"); E(f"v_add_u32 v10, {WS_A}, v10")
    E("v_mul_u32_u24 v11, 80, v5"); E("v_lshl_add_u32 v11, v6, 3, v11"); E("v_add_u32 v11, s46, v11")
    E("s_waitcnt vmcnt(0)"); E("v_lshlrev_b32 v2, 16, v2")
    for I in range(2):
        for r in range(16):
            row=(r//4)*8+r%4; x=64+I*16+r
            E(f"ds_read_u16 v3, v11 offset:{33280+(31+32*I)*80+row*2}"); bf16round(x,x,4); E("s_waitcnt lgkmcnt(0)")
            E("v_lshlrev_b32 v3, 16, v3"); E("v_mul_f32 v3, v3, v2"); bf16round(3,3,4); E(f"v_add_f32 v{x}, v{x}, v3"); bf16round(x,x,4)
            E(f"s_mov_b32 s23, {(I*1024+row)*2048}"); E(f"buffer_store_short_d16_hi v{x}, v10, s[16:19], s23 offen")
    E("s_branch K2_END")
    E("K2_RED:")
    E("s_sub_u32 s21, s2, 256"); E("s_mul_i32 s22, s21, 4224"); E(f"s_add_u32 s22, s22, {WS_KVP}"); E("s_lshl_b32 s23, s21, 12"); E(f"s_add_u32 s23, s23, {WS_KVT}")
    for i in range(5):
        E(f"v_add_u32 v3, {256*i}, v0")
        if i==4: E("v_and_b32 v3, 31, v0"); E("v_add_u32 v3, 1024, v3")
        E("v_lshl_add_u32 v4, v3, 2, s22")
        for m in range(8): E(f"s_mov_b32 s30, {m*32*4224}"); E(f"buffer_load_dword v{20+m}, v4, s[16:19], s30 offen")
        E("s_waitcnt vmcnt(0)")
        for m in range(1,8): E(f"v_add_f32 v20, v20, v{20+m}")
        bf16round(20,20,5)
        if i<4:
            E("v_lshrrev_b32 v5, 5, v3"); E("v_and_b32 v6, 31, v3"); E("v_lshl_add_u32 v5, v6, 5, v5"); E("v_lshl_add_u32 v5, v5, 1, s23")
            E("buffer_store_short_d16_hi v20, v5, s[16:19], 0 offen")
        else:
            for j in range(4):
                E(f"v_lshrrev_b32 v5, 5, v0"); E(f"v_add_u32 v5, {8*j}, v5"); E("v_and_b32 v6, 27, v5"); E("v_cmp_eq_u32 vcc, 0, v6"); E("s_nop 1"); E("v_cndmask_b32 v7, 0, v20, vcc")
                E(f"v_add_u32 v6, {256*j}, v0"); E("v_lshl_add_u32 v6, v6, 1, s23"); E("buffer_store_short_d16_hi v7, v6, s[16:19], 0 offen offset:2048")
    E("s_branch K2_END")
    E("K2_GATE:")
    srd(12,28,2048)
    E("v_lshlrev_b32 v3, 5, v1"); E("buffer_load_dwordx4 v[40:43], v3, s[12:15], 0 offen"); E("buffer_load_dwordx4 v[44:47], v3, s[12:15], 0 offen offset:16")
    E("s_sub_u32 s21, s2, 288"); E("s_lshl_b32 s21, s21, 2"); E("s_add_u32 s21, s21, s20"); E("s_lshl_b32 s21, s21, 4")
    for tk in range(16):
        E(f"s_add_u32 s22, s21, {tk}"); E("s_lshl_b32 s23, s22, 11")
        E("buffer_load_dwordx4 v[20:23], v3, s[8:11], s23 offen"); E("buffer_load_dwordx4 v[24:27], v3, s[8:11], s23 offen offset:16")
        E("s_waitcnt vmcnt(0)"); E("v_mov_b32 v30, 0")
        for q in range(8):
            E(f"v_lshlrev_b32 v4, 16, v{20+q}"); E(f"v_lshlrev_b32 v5, 16, v{40+q}"); E("v_mul_f32 v4, v4, v5"); bf16round(4,4,6); E("v_add_f32 v30, v30, v4")
            E(f"v_and_b32 v4, 0xffff0000, v{20+q}"); E(f"v_and_b32 v5, 0xffff0000, v{40+q}"); E("v_mul_f32 v4, v4, v5"); bf16round(4,4,6); E("v_add_f32 v30, v30, v4")
        for sh in (1,2,4,8,16,32):
            E(f"v_xor_b32 v4, {sh}, v1"); E("v_lshlrev_b32 v4, 2, v4"); E("ds_bpermute_b32 v5, v4, v30"); E("s_waitcnt lgkmcnt(0)"); E("v_add_f32 v30, v30, v5")
        bf16round(30,30,4); E(f"v_mul_f32 v30, 0xbfb8aa3b, v30"); E("v_exp_f32 v30, v30"); E("s_nop 0"); E("v_add_f32 v30, 1.0, v30"); E("v_rcp_f32 v30, v30"); E("s_nop 0"); bf16round(30,30,4)
        E("s_lshl_b32 s22, s22, 2"); E(f"s_add_u32 s22, s22, {WS_G}"); E("v_mov_b32 v4, s22"); E("buffer_store_dword v30, v4, s[16:19], 0 offen")
    E("K2_END:"); E("s_endpgm")

def k3():
    head("k3_kernel")
    E("s_cmp_ge_u32 s2, 128"); E("s_cbranch_scc1 K3_END")
    E("s_load_dwordx2 s[24:25], s[0:1], 88"); E("s_load_dwordx2 s[26:27], s[0:1], 104"); E("s_load_dwordx2 s[42:43], s[0:1], 120")
    E("s_mov_b32 s60, 0x7fff"); E("s_mov_b32 s61, 0x358637bd")
    E("v_and_b32 v1, 63, v0"); E("v_lshrrev_b32 v2, 6, v0"); E("s_nop 0"); E("v_readfirstlane_b32 s20, v2")
    E("s_waitcnt lgkmcnt(0)")
    srd(16,42,WS_SZ); srd(8,24,2<<20); srd(12,26,4<<20)
    E("s_and_b32 s21, s2, 7"); E("s_lshr_b32 s22, s2, 3")
    for j in range(2):
        E("s_lshl_b32 s23, s20, 7"); E(f"v_add_u32 v3, s23, v1"); E(f"v_add_u32 v3, {j*64}, v3")
        E("v_lshrrev_b32 v4, 4, v3"); E("v_and_b32 v5, 15, v3"); E("v_lshlrev_b32 v4, 11, v4"); E(f"v_lshl_add_u32 v{4+j+4}, v5, 4, v4"); E("s_lshl_b32 s23, s21, 8"); E(f"v_add_u32 v{8+j}, s23, v{8+j}")
    E("v_and_b32 v5, 31, v1"); E("v_lshrrev_b32 v6, 5, v1")
    E("v_lshlrev_b32 v10, 6, v5"); E("v_lshl_add_u32 v10, v6, 4, v10"); E(f"v_add_u32 v10, {WS_KVT}, v10")
    E("s_lshl_b32 s23, s22, 7"); E("s_lshl_b32 s30, s20, 5"); E("s_add_u32 s23, s23, s30")
    E("v_add_u32 v11, s23, v5"); E("v_lshlrev_b32 v11, 11, v11"); E("v_lshl_add_u32 v11, v6, 4, v11")
    E("v_lshlrev_b32 v3, 2, v6"); E("v_bfe_u32 v4, v1, 2, 2"); E("v_add_u32 v3, v3, v4"); E("v_bfe_u32 v4, v1, 4, 1"); E("v_lshlrev_b32 v4, 5, v4"); E("v_and_b32 v7, 3, v1"); E("v_lshl_add_u32 v4, v7, 3, v4"); E("v_lshl_add_u32 v12, v3, 8, v4")
    for i in range(64): E(f"v_mov_b32 v{128+i}, 0")
    def dma(buf,h):
        E(f"s_lshl_b32 s31, s{h}, 16")
        for j in range(2):
            E(f"s_lshl_b32 s30, s20, 11"); E(f"s_add_u32 s30, s30, s{buf}"); E(f"s_add_u32 m0, s30, {j*1024}"); E("s_nop 0"); E(f"buffer_load_dwordx4 v{8+j}, s[8:11], s31 offen lds")
    E("s_mov_b32 s50, 0"); E("s_mov_b32 s52, 0"); dma(50,52)
    E("K3_LOOP:")
    E("s_lshl_b32 s32, s52, 12"); E("s_lshl_b32 s33, s52, 6")
    for q in range(2):
        E(f"buffer_load_dwordx4 v[{20+4*q}:{23+4*q}], v10, s[16:19], s32 offen offset:{32*q}")
        E(f"buffer_load_dwordx4 v[{28+4*q}:{31+4*q}], v10, s[16:19], s32 offen offset:{2048+32*q}")
        E(f"buffer_load_dwordx4 v[{36+4*q}:{39+4*q}], v11, s[16:19], s33 offen offset:{32*q}")
    E("s_waitcnt vmcnt(6)"); E("s_barrier")
    E("s_xor_b32 s51, s50, 8192"); E("s_add_u32 s53, s52, 1"); E("s_min_u32 s53, s53, 31"); dma(51,53)
    for i in range(32): E(f"v_mov_b32 v{64+i}, 0")
    E("s_waitcnt vmcnt(2)")
    for q in range(2):
        E(f"v_mfma_f32_32x32x16_bf16 v[64:79], v[{20+4*q}:{23+4*q}], v[{36+4*q}:{39+4*q}], v[64:79]")
        E(f"v_mfma_f32_32x32x16_bf16 v[80:95], v[{28+4*q}:{31+4*q}], v[{36+4*q}:{39+4*q}], v[80:95]")
    E("v_add_u32 v13, s50, v12")
    E("s_nop 7"); E("s_nop 7")
    bf16round(80,80,2); E("v_add_f32 v80, s61, v80"); bf16round(80,80,2); E("v_rcp_f32 v80, v80"); E("s_nop 0")
    for r in range(16): bf16round(64+r,64+r,2); E(f"v_mul_f32 v{64+r}, v{64+r}, v80")
    for i in range(8): E(f"v_cvt_pk_bf16_f32 v{96+i}, v{64+2*i}, v{65+2*i}")
    for m in range(2):
        for nt in range(4):
            b=104+nt*4
            E(f"ds_read_b64_tr_b16 v[{b}:{b+1}], v13 offset:{(16*m)*256+nt*64}"); E(f"ds_read_b64_tr_b16 v[{b+2}:{b+3}], v13 offset:{(16*m+8)*256+nt*64}")
        E("s_waitcnt lgkmcnt(0)")
        for nt in range(4):
            a=128+nt*16; E(f"v_mfma_f32_32x32x16_bf16 v[{a}:{a+15}], v[{96+4*m}:{99+4*m}], v[{104+nt*4}:{107+nt*4}], v[{a}:{a+15}]")
    E("s_mov_b32 s50, s51"); E("s_add_u32 s52, s52, 1"); E("s_cmp_lt_u32 s52, 32"); E("s_cbranch_scc1 K3_LOOP")
    E("s_waitcnt vmcnt(0)"); E("s_nop 7"); E("s_nop 7")
    E("v_lshlrev_b32 v3, 2, v6"); E("v_add_u32 v3, s23, v3"); E("v_lshlrev_b32 v4, 2, v3"); E(f"v_add_u32 v4, {WS_G}, v4")
    E("v_lshlrev_b32 v3, 11, v3"); E("v_lshl_add_u32 v3, v5, 1, v3"); E("s_lshl_b32 s30, s21, 8"); E("v_add_u32 v3, s30, v3")
    for r in range(16):
        row=(r//4)*8+r%4
        E(f"buffer_load_dword v20, v4, s[16:19], 0 offen offset:{row*4}")
        E(f"s_mov_b32 s30, {WS_A+row*2048}"); E(f"s_mov_b32 s31, {row*2048}")
        for nt in range(4): E(f"buffer_load_ushort v{21+nt}, v3, s[16:19], s30 offen offset:{nt*64}")
        E("s_waitcnt vmcnt(0)"); E("v_sub_f32 v25, 1.0, v20"); bf16round(25,25,2)
        for nt in range(4):
            x=128+nt*16+r
            E(f"v_lshlrev_b32 v{21+nt}, 16, v{21+nt}"); E(f"v_mul_f32 v{21+nt}, v20, v{21+nt}"); bf16round(21+nt,21+nt,2)
            bf16round(x,x,2); E(f"v_mul_f32 v{x}, v25, v{x}"); bf16round(x,x,2); E(f"v_add_f32 v{x}, v{x}, v{21+nt}"); bf16round(x,x,2)
            E(f"buffer_store_short_d16_hi v{x}, v3, s[12:15], s31 offen offset:{nt*64}")
    E("K3_END:"); E("s_endpgm")

def desc(name,vg):
    E('.p2align 6'); E(f".amdhsa_kernel {name}")
    for l in [f".amdhsa_next_free_vgpr {vg}",".amdhsa_next_free_sgpr 102",f".amdhsa_accum_offset {(vg+3)//4*4}",".amdhsa_group_segment_fixed_size 0",".amdhsa_kernarg_size 128",".amdhsa_user_sgpr_count 2",".amdhsa_user_sgpr_kernarg_segment_ptr 1",".amdhsa_system_sgpr_workgroup_id_x 1"]: E("  "+l)
    E(".end_amdhsa_kernel")
if __name__=='__main__':
    E("; @launch kernel=k1_kernel grid=(512,1,1) block=(256,1,1) lds=69632")
    E("; @launch kernel=k2_kernel grid=(320,1,1) block=(256,1,1) lds=163840")
    E("; @launch kernel=k3_kernel grid=(128,1,1) block=(256,1,1) lds=16384")
    E('.amdgcn_target "amdgcn-amd-amdhsa--gfx950"'); E(".text")
    k1(); k2(); k3()
    E('.section .rodata,"a"'); desc("k1_kernel",160); desc("k2_kernel",96); desc("k3_kernel",192)
    open(sys.argv[1],'w').write("\n".join(out)+"\n")
```

```python
import sys
out=[]
def E(s): out.append(s)
lab=[0]
def L(p='L'):
    lab[0]+=1; return f"{p}_{lab[0]}"
WS_PQ=0; WS_KVP=4<<20; WS_KREV=6<<20; WS_A=10<<20; WS_KVT=14<<20; WS_G=15<<20; WS_SZ=20<<20; WS_XT=16<<20
NAME='gated_mix__ssm_conv_s4__linear_attn_block__prompt'
def srd(d,ptr,size):
    E(f"s_mov_b32 s{d}, s{ptr}"); E(f"s_and_b32 s{d+1}, s{ptr+1}, 0xffff"); E(f"s_mov_b32 s{d+2}, {size}"); E(f"s_mov_b32 s{d+3}, 0x20000")
def head(name):
    E(f".globl {name}"); E(".p2align 8"); E(f".type {name},@function"); E(f"{name}:")
LOG2E="0x3fb8aa3b"; INV2PI="0x3e22f983"
def bf16round(dst,src,tmp):
    E(f"v_bfe_u32 v{tmp}, v{src}, 16, 1"); E(f"v_add3_u32 v{dst}, v{src}, v{tmp}, s60"); E(f"v_and_b32 v{dst}, 0xffff0000, v{dst}")

def k1():
    head("k1_kernel")
    E("s_cmp_ge_u32 s2, 512"); E("s_cbranch_scc1 K1_END")
    E("s_load_dwordx16 s[24:39], s[0:1], 0")
    E("s_load_dwordx2 s[40:41], s[0:1], 80")
    E("s_load_dwordx2 s[42:43], s[0:1], 120")
    E("s_mov_b32 s60, 0x7fff")
    E("v_and_b32 v1, 63, v0"); E("v_lshrrev_b32 v2, 6, v0"); E("s_nop 0"); E("v_readfirstlane_b32 s20, v2")
    E("s_waitcnt lgkmcnt(0)")
    srd(16,42,WS_SZ)
    E("s_cmp_ge_u32 s2, 256"); E("s_cbranch_scc1 K1_KGEN")
    srd(8,24,4<<20); srd(12,40,6<<20)
    E("s_and_b32 s21, s2, 7"); E("s_lshl_b32 s21, s21, 2"); E("s_bfe_u32 s22, s2, 0x20003"); E("s_add_u32 s21, s21, s22")
    E("s_lshr_b32 s22, s2, 5")
    for j in range(4):
        E(f"s_lshl_b32 s23, s20, 8"); E(f"s_add_u32 s23, s23, {j*64}")
        E(f"v_add_u32 v3, s23, v1")
        E(f"v_lshrrev_b32 v8, 2, v3")
        E(f"v_lshrrev_b32 v9, 4, v3"); E("v_xor_b32 v9, v9, v3"); E("v_and_b32 v9, 3, v9")
        E(f"s_lshl_b32 s23, s22, 8"); E("v_add_u32 v8, s23, v8")
        E(f"v_lshlrev_b32 v8, 11, v8"); E(f"v_lshl_add_u32 v{4+j}, v9, 4, v8")
    E("s_cmp_eq_u32 s20, 3"); E("s_cselect_b32 s23, 0, s20")
    E("s_lshl_b32 s44, s23, 11"); E("s_lshl_b32 s45, s21, 6"); E("s_add_u32 s44, s44, s45")
    for j in range(2):
        E(f"v_add_u32 v3, {j*64}, v1"); E("v_lshrrev_b32 v8, 2, v3"); E("v_and_b32 v9, 3, v3")
        E("v_mul_u32_u24 v8, 6144, v8"); E(f"v_lshl_add_u32 v{10+j}, v9, 4, v8"); E(f"v_add_u32 v{10+j}, s44, v{10+j}")
    E("s_lshl_b32 s46, s20, 12")
    E("s_lshl_b32 s47, s23, 11"); E("s_add_u32 s47, s47, 16384")
    E("v_and_b32 v3, 31, v1"); E("v_lshrrev_b32 v8, 5, v1")
    E("s_lshl_b32 s23, s20, 6"); E("v_add_u32 v3, s23, v3")
    E("v_bfe_u32 v9, v3, 2, 2"); E("v_xor_b32 v9, v9, v8")
    E("v_lshlrev_b32 v3, 6, v3"); E("v_lshl_add_u32 v12, v9, 4, v3")
    E("v_xor_b32 v13, 32, v12")
    E("v_lshrrev_b32 v3, 5, v1"); E("v_lshlrev_b32 v3, 3, v3"); E("v_bfe_u32 v8, v1, 2, 2"); E("v_add_u32 v3, v3, v8")
    E("v_bfe_u32 v8, v1, 4, 1"); E("v_lshlrev_b32 v8, 5, v8"); E("v_and_b32 v9, 3, v1"); E("v_lshl_add_u32 v8, v9, 3, v8")
    E("v_lshl_add_u32 v14, v3, 6, v8"); E("v_add_u32 v14, 16384, v14")
    for i in range(96): E(f"v_mov_b32 v{64+i}, 0")
    def dma(bufreg,koff):
        for j in range(4):
            E(f"s_add_u32 s48, s{bufreg}, s46"); E(f"s_add_u32 m0, s48, {j*1024}"); E("s_nop 0")
            E(f"buffer_load_dwordx4 v{4+j}, s[8:11], s{koff} offen lds")
        E(f"s_add_u32 s48, s{bufreg}, s47"); E("s_cmp_eq_u32 s20, 3"); E(f"s_cselect_b32 s48, {3*22528}, s48")
        E(f"s_mul_i32 s49, s{koff}, 3072")
        for j in range(2):
            E(f"s_add_u32 m0, s48, {j*1024}"); E("s_nop 0")
            E(f"buffer_load_dwordx4 v{10+j}, s[12:15], s49 offen lds")
    E("s_mov_b32 s50, 0"); E("s_mov_b32 s51, 0"); dma(50,51)
    E("s_mov_b32 s50, 22528"); E("s_mov_b32 s51, 64"); dma(50,51)
    E("s_mov_b32 s52, 0")
    E("s_mov_b32 s53, 0")
    E("s_mov_b32 s50, 45056")
    E("K1_LOOP:")
    E("s_waitcnt vmcnt(6)"); E("s_barrier")
    E("s_add_u32 s51, s52, 2"); E("s_min_u32 s51, s51, 31"); E("s_lshl_b32 s51, s51, 6")
    dma(50,51)
    E("s_cmp_lg_u32 s52, s21"); E("s_cbranch_scc1 K1_NOXT")
    E("v_lshlrev_b32 v15, 6, v0"); E("v_add_u32 v15, s53, v15"); E("v_bfe_u32 v16, v0, 2, 2")
    E("s_lshl_b32 s48, s21, 17"); E("s_lshl_b32 s49, s22, 9"); E("s_add_u32 s48, s48, s49"); E(f"s_add_u32 s48, s48, {WS_XT}"); E("v_lshl_add_u32 v17, v0, 1, s48")
    for c in range(4):
        E(f"v_xor_b32 v18, {c}, v16"); E("v_lshl_add_u32 v18, v18, 4, v15"); E("ds_read_b128 v[20:23], v18"); E("s_waitcnt lgkmcnt(0)")
        for e in range(8):
            E(f"s_mov_b32 s49, {(c*8+e)*4096}"); E(f"buffer_store_short{'_d16_hi' if e%2 else ''} v{20+e//2}, v17, s[16:19], s49 offen")
    E("s_waitcnt vmcnt(0)")
    E("K1_NOXT:")
    E("v_add_u32 v15, s53, v12"); E("v_add_u32 v16, s53, v13"); E("v_add_u32 v17, s53, v14")
    def rd(q,base):
        a=15 if q==0 else 16
        E(f"ds_read_b128 v[{base}:{base+3}], v{a}"); E(f"ds_read_b128 v[{base+4}:{base+7}], v{a} offset:2048")
        for sg in range(3):
            E(f"ds_read_b64_tr_b16 v[{base+8+4*sg}:{base+9+4*sg}], v17 offset:{sg*2048+q*1024}")
            E(f"ds_read_b64_tr_b16 v[{base+10+4*sg}:{base+11+4*sg}], v17 offset:{sg*2048+q*1024+256}")
    def mm(base):
        for T in range(2):
            for sg in range(3):
                a=64+(T*3+sg)*16
                E(f"v_mfma_f32_32x32x16_bf16 v[{a}:{a+15}], v[{base+4*T}:{base+4*T+3}], v[{base+8+4*sg}:{base+11+4*sg}], v[{a}:{a+15}]")
    rd(0,20); rd(1,40)
    E("s_waitcnt lgkmcnt(8)"); mm(20); E("s_waitcnt lgkmcnt(0)"); mm(40)
    E("s_add_u32 s53, s53, 22528"); E("s_cmp_eq_u32 s53, 67584"); E("s_cselect_b32 s53, 0, s53")
    E("s_add_u32 s50, s50, 22528"); E("s_cmp_eq_u32 s50, 67584"); E("s_cselect_b32 s50, 0, s50")
    E("s_add_u32 s52, s52, 1"); E("s_cmp_lt_u32 s52, 32"); E("s_cbranch_scc1 K1_LOOP")
    E("s_waitcnt vmcnt(0)"); E("s_nop 7"); E("s_nop 7"); E("s_barrier")
    E("s_mov_b32 s61, 0x358637bd")
    for T in range(2):
        for sg in range(3):
            for r in range(16):
                x=64+(T*3+sg)*16+r
                bf16round(x,x,2)
                if sg<2:
                    E(f"v_mul_f32 v2, {LOG2E}, v{x}"); E("v_exp_f32 v2, v2"); E(f"v_add_f32 v3, 1.0, v{x}")
                    E(f"v_cmp_lt_f32 vcc, 0, v{x}"); E("s_nop 1"); E(f"v_cndmask_b32 v{x}, v2, v3, vcc")
                    bf16round(x,x,2); E(f"v_add_f32 v{x}, s61, v{x}"); bf16round(x,x,2)
    E("v_and_b32 v3, 31, v1"); E("v_lshrrev_b32 v8, 5, v1"); E("v_lshlrev_b32 v8, 8, v8")
    E("v_lshl_add_u32 v3, v3, 1, v8"); E("v_add_u32 v3, s46, v3")
    for T in range(2):
        for r in range(16):
            x=64+(T*3)*16+r
            E(f"ds_write_b16_d16_hi v3, v{x} offset:{(T*32+(r//4)*8+r%4)*64}")
    E("s_waitcnt lgkmcnt(0)")
    for it in range(4):
        E(f"v_lshlrev_b32 v3, 4, v1"); E(f"v_add_u32 v3, s46, v3"); E(f"ds_read_b128 v[20:23], v3 offset:{it*1024}")
        E(f"v_add_u32 v8, {it*64}, v1"); E("v_lshrrev_b32 v9, 2, v8"); E("v_and_b32 v8, 3, v8")
        E("s_lshl_b32 s23, s22, 8"); E("s_lshl_b32 s48, s20, 6"); E("s_add_u32 s23, s23, s48"); E("v_add_u32 v9, s23, v9")
        E("v_lshlrev_b32 v9, 11, v9"); E("v_lshl_add_u32 v9, v8, 4, v9"); E("s_lshl_b32 s23, s21, 6"); E("v_add_u32 v9, s23, v9")
        E("s_waitcnt lgkmcnt(0)"); E("buffer_store_dwordx4 v[20:23], v9, s[16:19], 0 offen"); E("s_nop 1")
    for i in range(32): E(f"v_mov_b32 v{20+i}, 0")
    for i in range(4): E(f"v_mov_b32 v{52+i}, 0x3f803f80")
    for T in range(2):
        for m in range(2):
            for i in range(4):
                kk=64+(T*3+1)*16+8*m+2*i; vv=64+(T*3+2)*16+8*m+2*i
                E(f"v_perm_b32 v{56+i}, v{kk+1}, v{kk}, s62") if False else None
                E(f"v_lshrrev_b32 v{56+i}, 16, v{kk}"); E(f"v_or_b32 v{56+i}, v{kk+1}, v{56+i}")
                E(f"v_lshrrev_b32 v{60+i}, 16, v{vv}"); E(f"v_or_b32 v{60+i}, v{vv+1}, v{60+i}")
            E("s_nop 1")
            E("v_mfma_f32_32x32x16_bf16 v[20:35], v[56:59], v[60:63], v[20:35]")
            E("v_mfma_f32_32x32x16_bf16 v[36:51], v[56:59], v[52:55], v[36:51]")
            E("s_nop 7")
    E("s_nop 7"); E("s_nop 7")
    E("s_barrier")
    E("s_mul_i32 s48, s20, 4352"); E("s_add_u32 s48, s48, 16384")
    E("v_and_b32 v3, 31, v1"); E("v_lshrrev_b32 v8, 5, v1"); E("v_lshlrev_b32 v8, 9, v8"); E("v_lshl_add_u32 v3, v3, 2, v8"); E("v_add_u32 v3, s48, v3")
    for r in range(16): E(f"ds_write_b32 v3, v{20+r} offset:{((r//4)*8+r%4)*128}")
    E("v_and_b32 v9, 31, v1"); E("v_cmp_eq_u32 vcc, 0, v9"); E("s_and_saveexec_b64 s[54:55], vcc")
    E("v_lshrrev_b32 v8, 5, v1"); E("v_lshlrev_b32 v8, 4, v8"); E("v_add_u32 v8, s48, v8")
    for r in range(16): E(f"ds_write_b32 v8, v{36+r} offset:{4096+((r//4)*8+r%4)*4}")
    E("s_mov_b64 exec, s[54:55]")
    E("s_waitcnt lgkmcnt(0)"); E("s_barrier")
    E("s_mul_i32 s48, s22, 32"); E("s_add_u32 s48, s48, s21"); E("s_mul_i32 s48, s48, 4224"); E(f"s_add_u32 s48, s48, {WS_KVP}")
    for i in range(5):
        E(f"v_add_u32 v3, {256*i}, v0"); E("v_cmp_gt_u32 vcc, 1056, v3"); E("s_and_saveexec_b64 s[54:55], vcc")
        E("v_lshlrev_b32 v3, 2, v3")
        for w in range(4): E(f"ds_read_b32 v{20+w}, v3 offset:{16384+w*4352}")
        E("s_waitcnt lgkmcnt(0)"); E("v_add_f32 v20, v20, v21"); E("v_add_f32 v22, v22, v23"); E("v_add_f32 v20, v20, v22")
        E("v_add_u32 v3, s48, v3"); E("buffer_store_dword v20, v3, s[16:19], 0 offen")
        E("s_mov_b64 exec, s[54:55]")
    E("s_branch K1_END")
    kgen()
    E("K1_END:"); E("s_endpgm")

def kgen():
    E("K1_KGEN:")
    E("s_sub_u32 s21, s2, 256"); E("s_lshl_b32 s21, s21, 2"); E("s_add_u32 s21, s21, s20")
    E("s_lshl_b32 s22, s21, 8")
    E("s_mul_i32 s46, s20, 16896")
    srd(8,38,2048)
    E("s_lshl_b32 s23, s21, 1"); E("v_mov_b32 v2, s23"); E("buffer_load_ushort v2, v2, s[8:11], 0 offen")
    for pi,ptr in enumerate([26,28,30,32,34,36]):
        srd(8,ptr,262144)
        for hf in range(2):
            E(f"v_lshl_add_u32 v3, v1, 1, s22"); E(f"buffer_load_ushort v{64+hf*8+pi}, v3, s[8:11], 0 offen offset:{hf*128}")
    E("s_waitcnt vmcnt(0)")
    E("v_lshlrev_b32 v2, 16, v2"); E(f"v_mul_f32 v2, {LOG2E}, v2"); E("v_exp_f32 v2, v2"); E("s_nop 0"); bf16round(2,2,3)
    for hf in range(2):
        b=64+hf*8
        for pi in range(6): E(f"v_lshlrev_b32 v{b+pi}, 16, v{b+pi}")
        E(f"v_mul_f32 v{b}, v2, v{b}"); E(f"v_mul_f32 v{b+1}, v2, v{b+1}")
        E(f"v_mul_f32 v{b+2}, v2, v{b+2}"); E(f"v_mul_f32 v{b+3}, v2, v{b+3}")
        E(f"v_mul_f32 v{b+6}, v{b+4}, v{b+2}"); E(f"v_fma_f32 v{b+6}, -v{b+5}, v{b+3}, v{b+6}")
        E(f"v_mul_f32 v{b+7}, v{b+4}, v{b+3}"); E(f"v_fma_f32 v{b+7}, v{b+5}, v{b+2}, v{b+7}")
    def dexp(dr,di,zb,Lval):
        E(f"v_mul_f32 v4, {float(Lval)}, v{zb}") if Lval in (1,2,4) else (E(f"s_mov_b32 s23, {hex(f2u(Lval))}"),E(f"v_mul_f32 v4, s23, v{zb}"))
        E(f"v_mul_f32 v5, s23, v{zb+1}") if Lval not in (1,2,4) else E(f"v_mul_f32 v5, {float(Lval)}, v{zb+1}")
        E(f"v_mul_f32 v4, {LOG2E}, v4"); E(f"v_mul_f32 v5, {INV2PI}, v5"); E("v_exp_f32 v4, v4"); E("v_fract_f32 v5, v5")
        E(f"v_cos_f32 v{dr}, v5"); E(f"v_sin_f32 v{di}, v5"); E("s_nop 0")
        E(f"v_mul_f32 v{dr}, v4, v{dr}"); E(f"v_mul_f32 v{di}, v4, v{di}")
    def cmul(dr,di,ar,ai,br,bi):
        E(f"v_mul_f32 v6, v{ar}, v{br}"); E(f"v_fma_f32 v6, -v{ai}, v{bi}, v6")
        E(f"v_mul_f32 v7, v{ar}, v{bi}"); E(f"v_fma_f32 v{di}, v{ai}, v{br}, v7"); E(f"v_mov_b32 v{dr}, v6")
    E("v_lshl_add_u32 v8, v1, 2, s46")
    E("v_and_b32 v9, 15, v1"); E("v_mul_u32_u24 v9, 528, v9"); E("v_lshrrev_b32 v3, 4, v1"); E("v_lshl_add_u32 v9, v3, 4, v9"); E("v_add_u32 v9, s46, v9")
    for bnd,(base,st,na,tb) in enumerate([(0,1,16,0),(256,2,8,256),(512,4,8,384),(1024,8,9,512)]):
        for hf in range(2):
            zb=64+hf*8
            dexp(10,11,zb,st)
            dexp(12,13,zb,16*st)
            if base:
                dexp(14,15,zb,base); cmul(14,15,14,15,zb+6,zb+7)
            else: E(f"v_mov_b32 v14, v{zb+6}"); E(f"v_mov_b32 v15, v{zb+7}")
            E("v_mov_b32 v16, 1.0"); E("v_mov_b32 v17, 0")
            for c in range(16):
                E("v_cvt_pk_bf16_f32 v18, v16, v17"); E(f"ds_write_b32 v8, v18 offset:{8448+c*528+hf*256}")
                if c<15: cmul(16,17,16,17,10,11)
            for a in range(na):
                E("v_sub_f32 v19, 0, v15"); E("v_cvt_pk_bf16_f32 v18, v14, v19"); E(f"ds_write_b32 v8, v18 offset:{a*528+hf*256}")
                if a<na-1: cmul(14,15,14,15,12,13)
        E("s_waitcnt lgkmcnt(0)")
        for i in range(4): E(f"v_mov_b32 v{20+i}, 0")
        for ks in range(8):
            E(f"ds_read_b128 v[24:27], v9 offset:{ks*64}"); E(f"ds_read_b128 v[28:31], v9 offset:{8448+ks*64}")
            E("s_waitcnt lgkmcnt(0)"); E("v_mfma_f32_16x16x32_bf16 v[20:23], v[24:27], v[28:31], v[20:23]")
        E("s_nop 7"); E("s_nop 3")
        for i in range(4): E(f"v_mov_b32 v{80+bnd*4+i}, v{20+i}")
    E("v_and_b32 v3, 15, v1"); E("v_lshrrev_b32 v4, 4, v1"); E("v_lshl_add_u32 v3, v4, 6, v3"); E("v_lshl_add_u32 v3, v3, 2, s46")
    for bnd,(tb,lim) in enumerate([(0,64),(256,32),(384,32),(512,48)]):
        E(f"v_cmp_gt_u32 vcc, {lim}, v1"); E("s_and_saveexec_b64 s[54:55], vcc")
        for r in range(4): E(f"ds_write_b32 v3, v{80+bnd*4+r} offset:{(tb+16*r)*4}")
        E("s_mov_b64 exec, s[54:55]")
    E("s_waitcnt lgkmcnt(0)")
    E("s_lshl_b32 s23, s21, 12"); E(f"s_add_u32 s23, s23, {WS_KREV}")
    def idx(dst,lreg):
        E(f"v_cvt_f32_u32 v4, v{lreg}"); bf16round(4,4,5); E("v_cvt_u32_f32 v4, v4")
        E(f"v_mov_b32 v{dst}, v4")
        for thr,sh,tb in [(256,1,256),(512,2,384),(1024,3,512)]:
            E(f"v_subrev_u32 v5, {thr}, v4"); E(f"v_lshrrev_b32 v5, {sh}, v5"); E(f"v_add_u32 v5, {tb}, v5")
            E(f"v_cmp_lt_u32 vcc, {thr}, v4"); E("s_nop 1"); E(f"v_cndmask_b32 v{dst}, v{dst}, v5, vcc")
        E(f"v_lshl_add_u32 v{dst}, v{dst}, 2, s46")
    for it in range(16):
        E(f"v_lshlrev_b32 v10, 1, v1"); E(f"v_sub_u32 v10, {2047-128*it}, v10"); E("v_add_u32 v11, -1, v10")
        idx(12,10); idx(13,11)
        E("ds_read_b32 v14, v12"); E("ds_read_b32 v15, v13"); E("s_waitcnt lgkmcnt(0)")
        E("v_cvt_pk_bf16_f32 v14, v14, v15"); E(f"v_lshl_add_u32 v16, v1, 2, s23")
        E(f"buffer_store_dword v14, v16, s[16:19], 0 offen offset:{it*256}")
    E("s_load_dwordx2 s[28:29], s[0:1], 96"); E("s_waitcnt lgkmcnt(0)"); srd(8,24,4<<20)
    srd(12,28,2048)
    E("v_lshlrev_b32 v3, 5, v1"); E("buffer_load_dwordx4 v[40:43], v3, s[12:15], 0 offen"); E("buffer_load_dwordx4 v[44:47], v3, s[12:15], 0 offen offset:16")
    E("s_lshl_b32 s21, s21, 1")
    for tk in range(2):
        E(f"s_add_u32 s22, s21, {tk}"); E("s_lshl_b32 s23, s22, 11")
        E("buffer_load_dwordx4 v[20:23], v3, s[8:11], s23 offen"); E("buffer_load_dwordx4 v[24:27], v3, s[8:11], s23 offen offset:16")
        E("s_waitcnt vmcnt(0)"); E("v_mov_b32 v30, 0")
        for q in range(8):
            E(f"v_lshlrev_b32 v4, 16, v{20+q}"); E(f"v_lshlrev_b32 v5, 16, v{40+q}"); E("v_mul_f32 v4, v4, v5"); bf16round(4,4,6); E("v_add_f32 v30, v30, v4")
            E(f"v_and_b32 v4, 0xffff0000, v{20+q}"); E(f"v_and_b32 v5, 0xffff0000, v{40+q}"); E("v_mul_f32 v4, v4, v5"); bf16round(4,4,6); E("v_add_f32 v30, v30, v4")
        for sh in (1,2,4,8,16,32):
            E(f"v_xor_b32 v4, {sh}, v1"); E("v_lshlrev_b32 v4, 2, v4"); E("ds_bpermute_b32 v5, v4, v30"); E("s_waitcnt lgkmcnt(0)"); E("v_add_f32 v30, v30, v5")
        bf16round(30,30,4); E(f"v_mul_f32 v30, 0xbfb8aa3b, v30"); E("v_exp_f32 v30, v30"); E("s_nop 0"); E("v_add_f32 v30, 1.0, v30"); E("v_rcp_f32 v30, v30"); E("s_nop 0"); bf16round(30,30,4)
        E("s_lshl_b32 s22, s22, 2"); E(f"s_add_u32 s22, s22, {WS_G}"); E("v_mov_b32 v4, s22"); E("buffer_store_dword v30, v4, s[16:19], 0 offen")
import struct
def f2u(x): return struct.unpack('<I',struct.pack('<f',float(x)))[0]


def k2():
    head("k2_kernel")
    E("s_cmp_ge_u32 s2, 256"); E("s_cbranch_scc1 K2_END")
    E("s_load_dwordx2 s[24:25], s[0:1], 0"); E("s_load_dwordx2 s[26:27], s[0:1], 64"); E("s_load_dwordx2 s[28:29], s[0:1], 96"); E("s_load_dwordx2 s[42:43], s[0:1], 120")
    E("s_mov_b32 s60, 0x7fff")
    E("v_and_b32 v1, 63, v0"); E("v_lshrrev_b32 v2, 6, v0"); E("s_nop 0"); E("v_readfirstlane_b32 s20, v2")
    E("s_waitcnt lgkmcnt(0)")
    srd(16,42,WS_SZ); srd(8,24,4<<20)
    E("s_lshl_b32 s21, s2, 2"); E("s_add_u32 s21, s21, s20")
    E("s_mul_i32 s46, s20, 40960")
    E("s_lshl_b32 s22, s21, 12"); E(f"s_add_u32 s22, s22, {WS_KREV}"); E("s_add_u32 s30, s42, s22"); E("s_addc_u32 s31, s43, 0"); srd(12,30,4096)
    for it in range(5):
        E(f"v_add_u32 v3, {it*64}, v1"); E("v_cmp_gt_u32 vcc, 260, v3"); E("s_and_saveexec_b64 s[54:55], vcc")
        E("v_lshlrev_b32 v3, 4, v3")
        E("buffer_load_dwordx4 v[20:23], v3, s[12:15], 0 offen"); E("buffer_load_dwordx4 v[24:27], v3, s[12:15], 0 offen offset:16")
        E("v_add_u32 v3, s46, v3"); E("s_waitcnt vmcnt(0)")
        for j in range(8):
            if j%2==0: E(f"ds_write_b128 v3, v[{20+j//2}:{23+j//2}] offset:{j*4160}") if (j//2)%2==0 else None
            if j%2==0 and (j//2)%2==1:
                for q in range(4): E(f"v_mov_b32 v{28+q}, v{20+j//2+q}")
                E("s_nop 0"); E(f"ds_write_b128 v3, v[28:31] offset:{j*4160}")
            if j%2==1:
                for q in range(4): E(f"v_alignbyte_b32 v{28+q}, v{20+(j+1)//2+q}, v{20+(j-1)//2+q}, 2")
                E("s_nop 0"); E(f"ds_write_b128 v3, v[28:31] offset:{j*4160}")
            E("s_waitcnt lgkmcnt(0)")
        E("s_mov_b64 exec, s[54:55]")
    for q in range(4): E(f"v_mov_b32 v{28+q}, 0")
    E("v_lshl_add_u32 v3, v1, 4, s46")
    for q in range(3):
        if q<2: E(f"ds_write_b128 v3, v[28:31] offset:{33280+q*1024}")
    E("v_cmp_gt_u32 vcc, 27, v1"); E("s_and_saveexec_b64 s[54:55], vcc"); E(f"ds_write_b128 v3, v[28:31] offset:{33280+2048}"); E("s_mov_b64 exec, s[54:55]")
    E("s_lshl_b32 s23, s21, 12"); E(f"s_add_u32 s23, s23, {WS_XT}"); E("v_lshlrev_b32 v5, 4, v1")
    E("v_lshrrev_b32 v4, 2, v1"); E("v_mul_u32_u24 v4, 80, v4"); E("v_and_b32 v6, 3, v1"); E("v_lshl_add_u32 v4, v6, 4, v4"); E("v_add_u32 v4, s46, v4")
    for it in range(4): E(f"buffer_load_dwordx4 v[{64+4*it}:{67+4*it}], v5, s[16:19], s23 offen offset:{it*1024}")
    E("s_waitcnt vmcnt(0)")
    for it in range(4): E(f"ds_write_b128 v4, v[{64+4*it}:{67+4*it}] offset:{33280+(31+16*it)*80}")
    E("v_and_b32 v5, 31, v1"); E("v_lshrrev_b32 v6, 5, v1")
    E("v_mul_u32_u24 v7, 80, v5"); E("v_lshl_add_u32 v7, v6, 4, v7"); E("v_add_u32 v7, s46, v7"); E("v_add_u32 v7, 33280, v7")
    E("v_sub_u32 v8, 7, v5"); E("v_and_b32 v8, 7, v8"); E("v_mul_u32_u24 v8, 4160, v8")
    E("v_lshrrev_b32 v9, 3, v5"); E("v_sub_u32 v9, v6, v9"); E("v_add_u32 v9, 3, v9"); E("v_lshl_add_u32 v8, v9, 4, v8"); E("v_add_u32 v8, s46, v8")
    for i in range(32): E(f"v_mov_b32 v{64+i}, 0")
    E("s_waitcnt lgkmcnt(0)")
    steps=[(k,ks) for k in range(64) for ks in range(2)]
    def rd(n):
        k,ks=steps[n]; b=20+(n%3)*12
        E(f"ds_read_b128 v[{b}:{b+3}], v8 offset:{64*(63-k)+32*ks}"); E(f"ds_read_b128 v[{b+4}:{b+7}], v7 offset:{(63-k)*80+32*ks}")
        if k<32: E(f"ds_read_b128 v[{b+8}:{b+11}], v7 offset:{(31-k)*80+32*ks}")
        else: E("s_nop 0") if False else None
    cnt=lambda n: 3 if steps[n][0]<32 else 2
    rd(0); rd(1)
    for n in range(len(steps)):
        if n+2<len(steps): rd(n+2)
        pend=sum(cnt(m) for m in (n+1,n+2) if m<len(steps))
        E(f"s_waitcnt lgkmcnt({pend})"); b=20+(n%3)*12
        E(f"v_mfma_f32_32x32x16_bf16 v[80:95], v[{b}:{b+3}], v[{b+4}:{b+7}], v[80:95]")
        if steps[n][0]<32: E(f"v_mfma_f32_32x32x16_bf16 v[64:79], v[{b}:{b+3}], v[{b+8}:{b+11}], v[64:79]")
    E("s_nop 7"); E("s_nop 7")
    srd(12,26,2048); E("s_lshl_b32 s23, s21, 1"); E("v_mov_b32 v2, s23"); E("buffer_load_ushort v2, v2, s[12:15], 0 offen")
    E("s_lshl_b32 s23, s21, 12"); E(f"s_add_u32 s23, s23, {WS_A}"); E("v_lshlrev_b32 v10, 6, v5"); E("v_lshl_add_u32 v10, v6, 3, v10")
    E("v_mul_u32_u24 v11, 80, v5"); E("v_lshl_add_u32 v11, v6, 3, v11"); E("v_add_u32 v11, s46, v11")
    E("s_waitcnt vmcnt(0)"); E("v_lshlrev_b32 v2, 16, v2")
    for I in range(2):
        for g4 in range(4):
            E(f"ds_read_b64 v[12:13], v11 offset:{33280+(31+32*I)*80+g4*16}"); E("s_waitcnt lgkmcnt(0)")
            for e in range(4):
                x=64+I*16+g4*4+e; bf16round(x,x,4)
                E(f"v_and_b32 v3, 0xffff0000, v{12+e//2}") if e%2 else E(f"v_lshlrev_b32 v3, 16, v{12+e//2}")
                E("v_mul_f32 v3, v3, v2"); bf16round(3,3,4); E(f"v_add_f32 v{x}, v{x}, v3"); bf16round(x,x,4)
            x=64+I*16+g4*4
            E(f"v_lshrrev_b32 v14, 16, v{x}"); E(f"v_or_b32 v14, v{x+1}, v14"); E(f"v_lshrrev_b32 v15, 16, v{x+2}"); E(f"v_or_b32 v15, v{x+3}, v15")
            E(f"buffer_store_dwordx2 v[14:15], v10, s[16:19], s23 offen offset:{I*2048+g4*16}"); E("s_nop 1")
    E("s_cmp_ge_u32 s2, 32"); E("s_cbranch_scc1 K2_END")
    E("s_mov_b32 s21, s2"); E("s_mul_i32 s22, s21, 4224"); E(f"s_add_u32 s22, s22, {WS_KVP}"); E("s_lshl_b32 s23, s21, 12"); E(f"s_add_u32 s23, s23, {WS_KVT}")
    for i in range(5):
        E(f"v_add_u32 v3, {256*i}, v0")
        if i==4: E("v_and_b32 v3, 31, v0"); E("v_add_u32 v3, 1024, v3")
        E("v_lshl_add_u32 v4, v3, 2, s22")
        for m in range(8): E(f"s_mov_b32 s30, {m*32*4224}"); E(f"buffer_load_dword v{20+m}, v4, s[16:19], s30 offen")
        E("s_waitcnt vmcnt(0)")
        for m in range(1,8): E(f"v_add_f32 v20, v20, v{20+m}")
        bf16round(20,20,5)
        if i<4:
            E("v_lshrrev_b32 v5, 5, v3"); E("v_and_b32 v6, 31, v3"); E("v_lshl_add_u32 v5, v6, 5, v5"); E("v_lshl_add_u32 v5, v5, 1, s23")
            E("buffer_store_short_d16_hi v20, v5, s[16:19], 0 offen")
        else:
            for j in range(4):
                E(f"v_lshrrev_b32 v5, 5, v0"); E(f"v_add_u32 v5, {8*j}, v5"); E("v_and_b32 v6, 27, v5"); E("v_cmp_eq_u32 vcc, 0, v6"); E("s_nop 1"); E("v_cndmask_b32 v7, 0, v20, vcc")
                E(f"v_add_u32 v6, {256*j}, v0"); E("v_lshl_add_u32 v6, v6, 1, s23"); E("buffer_store_short_d16_hi v7, v6, s[16:19], 0 offen offset:2048")
    E("K2_END:"); E("s_endpgm")

def k3():
    head("k3_kernel")
    E("s_cmp_ge_u32 s2, 256"); E("s_cbranch_scc1 K3_END")
    E("s_load_dwordx2 s[24:25], s[0:1], 88"); E("s_load_dwordx2 s[26:27], s[0:1], 104"); E("s_load_dwordx2 s[42:43], s[0:1], 120")
    E("s_mov_b32 s60, 0x7fff"); E("s_mov_b32 s61, 0x358637bd")
    E("v_and_b32 v1, 63, v0"); E("v_lshrrev_b32 v2, 6, v0"); E("s_nop 0"); E("v_readfirstlane_b32 s20, v2")
    E("s_waitcnt lgkmcnt(0)")
    srd(16,42,WS_SZ); srd(8,24,2<<20); srd(12,26,4<<20)
    E("s_and_b32 s21, s2, 15"); E("s_lshr_b32 s22, s2, 4")
    E("s_lshl_b32 s23, s20, 6"); E("v_add_u32 v3, s23, v1")
    E("v_lshrrev_b32 v4, 3, v3"); E("v_and_b32 v5, 7, v3"); E("v_lshlrev_b32 v4, 11, v4"); E("v_lshl_add_u32 v8, v5, 4, v4"); E("s_lshl_b32 s23, s21, 7"); E("v_add_u32 v8, s23, v8")
    E("v_and_b32 v5, 31, v1"); E("v_lshrrev_b32 v6, 5, v1")
    E("v_lshlrev_b32 v10, 6, v5"); E("v_lshl_add_u32 v10, v6, 4, v10"); E(f"v_add_u32 v10, {WS_KVT}, v10")
    E("s_lshl_b32 s23, s22, 7"); E("s_lshl_b32 s30, s20, 5"); E("s_add_u32 s23, s23, s30")
    E("v_add_u32 v11, s23, v5"); E("v_lshlrev_b32 v11, 11, v11"); E("v_lshl_add_u32 v11, v6, 4, v11")
    E("v_lshlrev_b32 v3, 2, v6"); E("v_bfe_u32 v4, v1, 2, 2"); E("v_add_u32 v3, v3, v4"); E("v_bfe_u32 v4, v1, 4, 1"); E("v_lshlrev_b32 v4, 5, v4"); E("v_and_b32 v7, 3, v1"); E("v_lshl_add_u32 v4, v7, 3, v4"); E("v_lshl_add_u32 v12, v3, 7, v4")
    for i in range(32): E(f"v_mov_b32 v{128+i}, 0")
    def loads(h):
        E(f"s_lshl_b32 s32, s{h}, 12"); E(f"s_lshl_b32 s33, s{h}, 6"); E(f"s_lshl_b32 s31, s{h}, 16")
        E("s_lshl_b32 s30, s20, 10"); E("s_add_u32 m0, s30, s51"); E("s_nop 0"); E("buffer_load_dwordx4 v8, s[8:11], s31 offen lds")
        for q in range(2):
            E(f"buffer_load_dwordx4 v[{20+4*q}:{23+4*q}], v10, s[16:19], s32 offen offset:{32*q}")
            E(f"buffer_load_dwordx4 v[{28+4*q}:{31+4*q}], v10, s[16:19], s32 offen offset:{2048+32*q}")
            E(f"buffer_load_dwordx4 v[{36+4*q}:{39+4*q}], v11, s[16:19], s33 offen offset:{32*q}")
    E("s_mov_b32 s51, 0"); E("s_mov_b32 s52, 0"); loads(52); E("s_mov_b32 s50, 0")
    E("K3_LOOP:")
    for i in range(32): E(f"v_mov_b32 v{64+i}, 0")
    E("s_waitcnt vmcnt(0)")
    for q in range(2):
        E(f"v_mfma_f32_32x32x16_bf16 v[64:79], v[{20+4*q}:{23+4*q}], v[{36+4*q}:{39+4*q}], v[64:79]")
        E(f"v_mfma_f32_32x32x16_bf16 v[80:95], v[{28+4*q}:{31+4*q}], v[{36+4*q}:{39+4*q}], v[80:95]")
    E("s_barrier")
    E("s_xor_b32 s51, s50, 4096"); E("s_add_u32 s53, s52, 1"); E("s_min_u32 s53, s53, 31"); loads(53)
    E("v_add_u32 v13, s50, v12")
    for m in range(2):
        for nt in range(2):
            b=104+(m*2+nt)*4
            E(f"ds_read_b64_tr_b16 v[{b}:{b+1}], v13 offset:{(16*m)*128+nt*64}"); E(f"ds_read_b64_tr_b16 v[{b+2}:{b+3}], v13 offset:{(16*m+8)*128+nt*64}")
    E("s_nop 7")
    bf16round(80,80,2); E("v_add_f32 v80, s61, v80"); bf16round(80,80,2); E("v_rcp_f32 v80, v80"); E("s_nop 0")
    for r in range(16): bf16round(64+r,64+r,2); E(f"v_mul_f32 v{64+r}, v{64+r}, v80")
    for i in range(8): E(f"v_cvt_pk_bf16_f32 v{96+i}, v{64+2*i}, v{65+2*i}")
    E("s_waitcnt lgkmcnt(0)")
    for m in range(2):
        for nt in range(2):
            a=128+nt*16; b=104+(m*2+nt)*4; E(f"v_mfma_f32_32x32x16_bf16 v[{a}:{a+15}], v[{96+4*m}:{99+4*m}], v[{b}:{b+3}], v[{a}:{a+15}]")
    E("s_mov_b32 s50, s51"); E("s_add_u32 s52, s52, 1"); E("s_cmp_lt_u32 s52, 32"); E("s_cbranch_scc1 K3_LOOP")
    E("s_waitcnt vmcnt(0)")
    E("v_lshlrev_b32 v3, 2, v6"); E("v_add_u32 v3, s23, v3"); E("v_lshlrev_b32 v4, 2, v3"); E(f"v_add_u32 v4, {WS_G}, v4")
    E("v_lshlrev_b32 v3, 11, v3"); E("v_lshl_add_u32 v3, v5, 1, v3"); E("s_lshl_b32 s30, s21, 7"); E("v_add_u32 v3, s30, v3")
    for r in range(16):
        row=(r//4)*8+r%4
        E(f"buffer_load_dword v{20+r}, v4, s[16:19], 0 offen offset:{row*4}"); E(f"s_mov_b32 s30, {WS_A+row*2048}")
    E("s_lshl_b32 s30, s21, 6"); E("v_add_u32 v7, s30, v5"); E("v_lshlrev_b32 v7, 12, v7"); E("v_lshl_add_u32 v7, v6, 3, v7"); E("s_lshl_b32 s30, s23, 1"); E(f"s_add_u32 s30, s30, {WS_A}")
    for nt in range(2):
        for g4 in range(4): E(f"s_add_u32 s31, s30, {nt*32*4096}"); E(f"buffer_load_dwordx2 v[{64+nt*8+g4*2}:{65+nt*8+g4*2}], v7, s[16:19], s31 offen offset:{g4*16}")
    E("s_waitcnt vmcnt(0)")
    for r in range(16):
        row=(r//4)*8+r%4; E(f"s_mov_b32 s31, {row*2048}")
        E(f"v_sub_f32 v40, 1.0, v{20+r}"); bf16round(40,40,2)
        for nt in range(2):
            x=128+nt*16+r; a=41; src=64+nt*8+(r//4)*2+(r%4)//2
            E(f"v_and_b32 v{a}, 0xffff0000, v{src}") if r%2 else E(f"v_lshlrev_b32 v{a}, 16, v{src}")
            E(f"v_mul_f32 v{a}, v{20+r}, v{a}"); bf16round(a,a,2)
            bf16round(x,x,2); E(f"v_mul_f32 v{x}, v40, v{x}"); bf16round(x,x,2); E(f"v_add_f32 v{x}, v{x}, v{a}"); bf16round(x,x,2)
            E(f"buffer_store_short_d16_hi v{x}, v3, s[12:15], s31 offen offset:{nt*64}")
    E("K3_END:"); E("s_endpgm")

def desc(name,vg):
    E('.p2align 6'); E(f".amdhsa_kernel {name}")
    for l in [f".amdhsa_next_free_vgpr {vg}",".amdhsa_next_free_sgpr 102",f".amdhsa_accum_offset {(vg+3)//4*4}",".amdhsa_group_segment_fixed_size 0",".amdhsa_kernarg_size 128",".amdhsa_user_sgpr_count 2",".amdhsa_user_sgpr_kernarg_segment_ptr 1",".amdhsa_system_sgpr_workgroup_id_x 1"]: E("  "+l)
    E(".end_amdhsa_kernel")
if __name__=='__main__':
    E("; @launch kernel=k1_kernel grid=(512,1,1) block=(256,1,1) lds=69632")
    E("; @launch kernel=k2_kernel grid=(256,1,1) block=(256,1,1) lds=163840")
    E("; @launch kernel=k3_kernel grid=(256,1,1) block=(256,1,1) lds=8192")
    E('.amdgcn_target "amdgcn-amd-amdhsa--gfx950"'); E(".text")
    k1(); k2(); k3()
    E('.section .rodata,"a"'); desc("k1_kernel",160); desc("k2_kernel",96); desc("k3_kernel",160)
    open(sys.argv[1],'w').write("\n".join(out)+"\n")
```

```python
import sys
out=[]
def E(s): out.append(s)
lab=[0]
def L(p='L'):
    lab[0]+=1; return f"{p}_{lab[0]}"
WS_PQ=0; WS_KVP=4<<20; WS_KREV=6<<20; WS_A=10<<20; WS_KVT=14<<20; WS_G=15<<20; WS_SZ=20<<20; WS_XT=16<<20
NAME='gated_mix__ssm_conv_s4__linear_attn_block__prompt'
def srd(d,ptr,size):
    E(f"s_mov_b32 s{d}, s{ptr}"); E(f"s_and_b32 s{d+1}, s{ptr+1}, 0xffff"); E(f"s_mov_b32 s{d+2}, {size}"); E(f"s_mov_b32 s{d+3}, 0x20000")
def head(name):
    E(f".globl {name}"); E(".p2align 8"); E(f".type {name},@function"); E(f"{name}:")
LOG2E="0x3fb8aa3b"; INV2PI="0x3e22f983"
def bf16round(dst,src,tmp):
    E(f"v_bfe_u32 v{tmp}, v{src}, 16, 1"); E(f"v_add3_u32 v{dst}, v{src}, v{tmp}, s60"); E(f"v_and_b32 v{dst}, 0xffff0000, v{dst}")

def k1():
    head("k1_kernel")
    E("s_cmp_ge_u32 s2, 512"); E("s_cbranch_scc1 K1_END")
    E("s_load_dwordx16 s[24:39], s[0:1], 0")
    E("s_load_dwordx2 s[40:41], s[0:1], 80")
    E("s_load_dwordx2 s[42:43], s[0:1], 120")
    E("s_mov_b32 s60, 0x7fff")
    E("v_and_b32 v1, 63, v0"); E("v_lshrrev_b32 v2, 6, v0"); E("s_nop 0"); E("v_readfirstlane_b32 s20, v2")
    E("s_waitcnt lgkmcnt(0)")
    srd(16,42,WS_SZ)
    E("s_cmp_ge_u32 s2, 256"); E("s_cbranch_scc1 K1_KGEN")
    srd(8,24,4<<20); srd(12,40,6<<20)
    E("s_and_b32 s21, s2, 7"); E("s_lshl_b32 s21, s21, 2"); E("s_bfe_u32 s22, s2, 0x20003"); E("s_add_u32 s21, s21, s22")
    E("s_lshr_b32 s22, s2, 5")
    for j in range(4):
        E(f"s_lshl_b32 s23, s20, 8"); E(f"s_add_u32 s23, s23, {j*64}")
        E(f"v_add_u32 v3, s23, v1")
        E(f"v_lshrrev_b32 v8, 2, v3")
        E(f"v_lshrrev_b32 v9, 4, v3"); E("v_xor_b32 v9, v9, v3"); E("v_and_b32 v9, 3, v9")
        E(f"s_lshl_b32 s23, s22, 8"); E("v_add_u32 v8, s23, v8")
        E(f"v_lshlrev_b32 v8, 11, v8"); E(f"v_lshl_add_u32 v{4+j}, v9, 4, v8")
    E("s_cmp_eq_u32 s20, 3"); E("s_cselect_b32 s23, 0, s20")
    E("s_lshl_b32 s44, s23, 11"); E("s_lshl_b32 s45, s21, 6"); E("s_add_u32 s44, s44, s45")
    for j in range(2):
        E(f"v_add_u32 v3, {j*64}, v1"); E("v_lshrrev_b32 v8, 2, v3"); E("v_and_b32 v9, 3, v3")
        E("v_mul_u32_u24 v8, 6144, v8"); E(f"v_lshl_add_u32 v{10+j}, v9, 4, v8"); E(f"v_add_u32 v{10+j}, s44, v{10+j}")
    E("s_lshl_b32 s46, s20, 12")
    E("s_lshl_b32 s47, s23, 11"); E("s_add_u32 s47, s47, 16384")
    E("v_and_b32 v3, 31, v1"); E("v_lshrrev_b32 v8, 5, v1")
    E("s_lshl_b32 s23, s20, 6"); E("v_add_u32 v3, s23, v3")
    E("v_bfe_u32 v9, v3, 2, 2"); E("v_xor_b32 v9, v9, v8")
    E("v_lshlrev_b32 v3, 6, v3"); E("v_lshl_add_u32 v12, v9, 4, v3")
    E("v_xor_b32 v13, 32, v12")
    E("v_lshrrev_b32 v3, 5, v1"); E("v_lshlrev_b32 v3, 3, v3"); E("v_bfe_u32 v8, v1, 2, 2"); E("v_add_u32 v3, v3, v8")
    E("v_bfe_u32 v8, v1, 4, 1"); E("v_lshlrev_b32 v8, 5, v8"); E("v_and_b32 v9, 3, v1"); E("v_lshl_add_u32 v8, v9, 3, v8")
    E("v_lshl_add_u32 v14, v3, 6, v8"); E("v_add_u32 v14, 16384, v14")
    for i in range(96): E(f"v_mov_b32 v{64+i}, 0")
    def dma(bufreg,koff):
        for j in range(4):
            E(f"s_add_u32 s48, s{bufreg}, s46"); E(f"s_add_u32 m0, s48, {j*1024}"); E("s_nop 0")
            E(f"buffer_load_dwordx4 v{4+j}, s[8:11], s{koff} offen lds")
        E(f"s_add_u32 s48, s{bufreg}, s47"); E("s_cmp_eq_u32 s20, 3"); E(f"s_cselect_b32 s48, {3*22528}, s48")
        E(f"s_mul_i32 s49, s{koff}, 3072")
        for j in range(2):
            E(f"s_add_u32 m0, s48, {j*1024}"); E("s_nop 0")
            E(f"buffer_load_dwordx4 v{10+j}, s[12:15], s49 offen lds")
    E("s_mov_b32 s50, 0"); E("s_mov_b32 s51, 0"); dma(50,51)
    E("s_mov_b32 s50, 22528"); E("s_mov_b32 s51, 64"); dma(50,51)
    E("s_mov_b32 s52, 0")
    E("s_mov_b32 s53, 0")
    E("s_mov_b32 s50, 45056")
    E("K1_LOOP:")
    E("s_waitcnt vmcnt(6)"); E("s_barrier")
    E("s_add_u32 s51, s52, 2"); E("s_min_u32 s51, s51, 31"); E("s_lshl_b32 s51, s51, 6")
    E("s_cmp_lg_u32 s52, s21"); E("s_cbranch_scc1 K1_NOXT")
    E("v_lshlrev_b32 v15, 6, v0"); E("v_add_u32 v15, s53, v15"); E("v_bfe_u32 v16, v0, 2, 2")
    E("s_lshl_b32 s48, s21, 17"); E("s_lshl_b32 s49, s22, 9"); E("s_add_u32 s48, s48, s49"); E(f"s_add_u32 s48, s48, {WS_XT}"); E("v_lshl_add_u32 v17, v0, 1, s48")
    for c in range(4):
        E(f"v_xor_b32 v18, {c}, v16"); E("v_lshl_add_u32 v18, v18, 4, v15"); E("ds_read_b128 v[20:23], v18"); E("s_waitcnt lgkmcnt(0)")
        for e in range(8):
            E(f"s_mov_b32 s49, {(c*8+e)*4096}"); E(f"buffer_store_short{'_d16_hi' if e%2 else ''} v{20+e//2}, v17, s[16:19], s49 offen")
    E("s_waitcnt vmcnt(0)")
    E("K1_NOXT:")
    E("v_add_u32 v15, s53, v12"); E("v_add_u32 v16, s53, v13"); E("v_add_u32 v17, s53, v14")
    def rd(q,base):
        a=15 if q==0 else 16
        E(f"ds_read_b128 v[{base}:{base+3}], v{a}"); E(f"ds_read_b128 v[{base+4}:{base+7}], v{a} offset:2048")
        for sg in range(3):
            E(f"ds_read_b64_tr_b16 v[{base+8+4*sg}:{base+9+4*sg}], v17 offset:{sg*2048+q*1024}")
            E(f"ds_read_b64_tr_b16 v[{base+10+4*sg}:{base+11+4*sg}], v17 offset:{sg*2048+q*1024+256}")
    def piece(i):
        if i<4:
            E("s_add_u32 s48, s50, s46"); E(f"s_add_u32 m0, s48, {i*1024}"); E("s_nop 0"); E(f"buffer_load_dwordx4 v{4+i}, s[8:11], s51 offen lds")
        else:
            E("s_add_u32 s48, s50, s47"); E("s_cmp_eq_u32 s20, 3"); E(f"s_cselect_b32 s48, {3*22528}, s48"); E("s_mul_i32 s49, s51, 3072")
            E(f"s_add_u32 m0, s48, {(i-4)*1024}"); E("s_nop 0"); E(f"buffer_load_dwordx4 v{10+i-4}, s[12:15], s49 offen lds")
    def mm(base,p0):
        for T in range(2):
            for sg in range(3):
                a=64+(T*3+sg)*16
                E(f"v_mfma_f32_32x32x16_bf16 v[{a}:{a+15}], v[{base+4*T}:{base+4*T+3}], v[{base+8+4*sg}:{base+11+4*sg}], v[{a}:{a+15}]")
                if (T*3+sg)%2==0: piece(p0+(T*3+sg)//2)
    rd(0,20); rd(1,40)
    E("s_waitcnt lgkmcnt(8)"); mm(20,0); E("s_waitcnt lgkmcnt(0)"); mm(40,3)
    E("s_add_u32 s53, s53, 22528"); E("s_cmp_eq_u32 s53, 67584"); E("s_cselect_b32 s53, 0, s53")
    E("s_add_u32 s50, s50, 22528"); E("s_cmp_eq_u32 s50, 67584"); E("s_cselect_b32 s50, 0, s50")
    E("s_add_u32 s52, s52, 1"); E("s_cmp_lt_u32 s52, 32"); E("s_cbranch_scc1 K1_LOOP")
    E("s_waitcnt vmcnt(0)"); E("s_nop 7"); E("s_nop 7"); E("s_barrier")
    E("s_mov_b32 s61, 0x358637bd")
    for T in range(2):
        for sg in range(3):
            for r in range(16):
                x=64+(T*3+sg)*16+r
                bf16round(x,x,2)
                if sg<2:
                    E(f"v_mul_f32 v2, {LOG2E}, v{x}"); E("v_exp_f32 v2, v2"); E(f"v_add_f32 v3, 1.0, v{x}")
                    E(f"v_cmp_lt_f32 vcc, 0, v{x}"); E("s_nop 1"); E(f"v_cndmask_b32 v{x}, v2, v3, vcc")
                    bf16round(x,x,2); E(f"v_add_f32 v{x}, s61, v{x}"); bf16round(x,x,2)
    E("v_and_b32 v3, 31, v1"); E("v_lshrrev_b32 v8, 5, v1"); E("v_lshlrev_b32 v8, 8, v8")
    E("v_lshl_add_u32 v3, v3, 1, v8"); E("v_add_u32 v3, s46, v3")
    for T in range(2):
        for r in range(16):
            x=64+(T*3)*16+r
            E(f"ds_write_b16_d16_hi v3, v{x} offset:{(T*32+(r//4)*8+r%4)*64}")
    E("s_waitcnt lgkmcnt(0)")
    for it in range(4):
        E(f"v_lshlrev_b32 v3, 4, v1"); E(f"v_add_u32 v3, s46, v3"); E(f"ds_read_b128 v[20:23], v3 offset:{it*1024}")
        E(f"v_add_u32 v8, {it*64}, v1"); E("v_lshrrev_b32 v9, 2, v8"); E("v_and_b32 v8, 3, v8")
        E("s_lshl_b32 s23, s22, 8"); E("s_lshl_b32 s48, s20, 6"); E("s_add_u32 s23, s23, s48"); E("v_add_u32 v9, s23, v9")
        E("v_lshlrev_b32 v9, 6, v9"); E("v_lshl_add_u32 v9, v8, 4, v9"); E("s_lshl_b32 s23, s21, 17"); E("v_add_u32 v9, s23, v9")
        E("s_waitcnt lgkmcnt(0)"); E("buffer_store_dwordx4 v[20:23], v9, s[16:19], 0 offen"); E("s_nop 1")
    for i in range(32): E(f"v_mov_b32 v{20+i}, 0")
    for i in range(4): E(f"v_mov_b32 v{52+i}, 0x3f803f80")
    for T in range(2):
        for m in range(2):
            for i in range(4):
                kk=64+(T*3+1)*16+8*m+2*i; vv=64+(T*3+2)*16+8*m+2*i
                E(f"v_perm_b32 v{56+i}, v{kk+1}, v{kk}, s62") if False else None
                E(f"v_lshrrev_b32 v{56+i}, 16, v{kk}"); E(f"v_or_b32 v{56+i}, v{kk+1}, v{56+i}")
                E(f"v_lshrrev_b32 v{60+i}, 16, v{vv}"); E(f"v_or_b32 v{60+i}, v{vv+1}, v{60+i}")
            E("s_nop 1")
            E("v_mfma_f32_32x32x16_bf16 v[20:35], v[56:59], v[60:63], v[20:35]")
            E("v_mfma_f32_32x32x16_bf16 v[36:51], v[56:59], v[52:55], v[36:51]")
            E("s_nop 7")
    E("s_nop 7"); E("s_nop 7")
    E("s_barrier")
    E("s_mul_i32 s48, s20, 4352"); E("s_add_u32 s48, s48, 16384")
    E("v_and_b32 v3, 31, v1"); E("v_lshrrev_b32 v8, 5, v1"); E("v_lshlrev_b32 v8, 9, v8"); E("v_lshl_add_u32 v3, v3, 2, v8"); E("v_add_u32 v3, s48, v3")
    for r in range(16): E(f"ds_write_b32 v3, v{20+r} offset:{((r//4)*8+r%4)*128}")
    E("v_and_b32 v9, 31, v1"); E("v_cmp_eq_u32 vcc, 0, v9"); E("s_and_saveexec_b64 s[54:55], vcc")
    E("v_lshrrev_b32 v8, 5, v1"); E("v_lshlrev_b32 v8, 4, v8"); E("v_add_u32 v8, s48, v8")
    for r in range(16): E(f"ds_write_b32 v8, v{36+r} offset:{4096+((r//4)*8+r%4)*4}")
    E("s_mov_b64 exec, s[54:55]")
    E("s_waitcnt lgkmcnt(0)"); E("s_barrier")
    E("s_mul_i32 s48, s22, 32"); E("s_add_u32 s48, s48, s21"); E("s_mul_i32 s48, s48, 4224"); E(f"s_add_u32 s48, s48, {WS_KVP}")
    for i in range(5):
        E(f"v_add_u32 v3, {256*i}, v0"); E("v_cmp_gt_u32 vcc, 1056, v3"); E("s_and_saveexec_b64 s[54:55], vcc")
        E("v_lshlrev_b32 v3, 2, v3")
        for w in range(4): E(f"ds_read_b32 v{20+w}, v3 offset:{16384+w*4352}")
        E("s_waitcnt lgkmcnt(0)"); E("v_add_f32 v20, v20, v21"); E("v_add_f32 v22, v22, v23"); E("v_add_f32 v20, v20, v22")
        E("v_add_u32 v3, s48, v3"); E("buffer_store_dword v20, v3, s[16:19], 0 offen")
        E("s_mov_b64 exec, s[54:55]")
    E("s_branch K1_END")
    kgen()
    E("K1_END:"); E("s_endpgm")

def kgen():
    E("K1_KGEN:")
    E("s_sub_u32 s21, s2, 256"); E("s_lshl_b32 s21, s21, 2"); E("s_add_u32 s21, s21, s20")
    E("s_lshl_b32 s22, s21, 8")
    E("s_mul_i32 s46, s20, 16896")
    srd(8,38,2048)
    E("s_lshl_b32 s23, s21, 1"); E("v_mov_b32 v2, s23"); E("buffer_load_ushort v2, v2, s[8:11], 0 offen")
    for pi,ptr in enumerate([26,28,30,32,34,36]):
        srd(8,ptr,262144)
        for hf in range(2):
            E(f"v_lshl_add_u32 v3, v1, 1, s22"); E(f"buffer_load_ushort v{64+hf*8+pi}, v3, s[8:11], 0 offen offset:{hf*128}")
    E("s_waitcnt vmcnt(0)")
    E("v_lshlrev_b32 v2, 16, v2"); E(f"v_mul_f32 v2, {LOG2E}, v2"); E("v_exp_f32 v2, v2"); E("s_nop 0"); bf16round(2,2,3)
    for hf in range(2):
        b=64+hf*8
        for pi in range(6): E(f"v_lshlrev_b32 v{b+pi}, 16, v{b+pi}")
        E(f"v_mul_f32 v{b}, v2, v{b}"); E(f"v_mul_f32 v{b+1}, v2, v{b+1}")
        E(f"v_mul_f32 v{b+2}, v2, v{b+2}"); E(f"v_mul_f32 v{b+3}, v2, v{b+3}")
        E(f"v_mul_f32 v{b+6}, v{b+4}, v{b+2}"); E(f"v_fma_f32 v{b+6}, -v{b+5}, v{b+3}, v{b+6}")
        E(f"v_mul_f32 v{b+7}, v{b+4}, v{b+3}"); E(f"v_fma_f32 v{b+7}, v{b+5}, v{b+2}, v{b+7}")
    def dexp(dr,di,zb,Lval):
        E(f"v_mul_f32 v4, {float(Lval)}, v{zb}") if Lval in (1,2,4) else (E(f"s_mov_b32 s23, {hex(f2u(Lval))}"),E(f"v_mul_f32 v4, s23, v{zb}"))
        E(f"v_mul_f32 v5, s23, v{zb+1}") if Lval not in (1,2,4) else E(f"v_mul_f32 v5, {float(Lval)}, v{zb+1}")
        E(f"v_mul_f32 v4, {LOG2E}, v4"); E(f"v_mul_f32 v5, {INV2PI}, v5"); E("v_exp_f32 v4, v4"); E("v_fract_f32 v5, v5")
        E(f"v_cos_f32 v{dr}, v5"); E(f"v_sin_f32 v{di}, v5"); E("s_nop 0")
        E(f"v_mul_f32 v{dr}, v4, v{dr}"); E(f"v_mul_f32 v{di}, v4, v{di}")
    def cmul(dr,di,ar,ai,br,bi):
        E(f"v_mul_f32 v6, v{ar}, v{br}"); E(f"v_fma_f32 v6, -v{ai}, v{bi}, v6")
        E(f"v_mul_f32 v7, v{ar}, v{bi}"); E(f"v_fma_f32 v{di}, v{ai}, v{br}, v7"); E(f"v_mov_b32 v{dr}, v6")
    E("v_lshl_add_u32 v8, v1, 2, s46")
    E("v_and_b32 v9, 15, v1"); E("v_mul_u32_u24 v9, 528, v9"); E("v_lshrrev_b32 v3, 4, v1"); E("v_lshl_add_u32 v9, v3, 4, v9"); E("v_add_u32 v9, s46, v9")
    for bnd,(base,st,na,tb) in enumerate([(0,1,16,0),(256,2,8,256),(512,4,8,384),(1024,8,9,512)]):
        for hf in range(2):
            zb=64+hf*8
            dexp(10,11,zb,st)
            dexp(12,13,zb,16*st)
            if base:
                dexp(14,15,zb,base); cmul(14,15,14,15,zb+6,zb+7)
            else: E(f"v_mov_b32 v14, v{zb+6}"); E(f"v_mov_b32 v15, v{zb+7}")
            E("v_mov_b32 v16, 1.0"); E("v_mov_b32 v17, 0")
            for c in range(16):
                E("v_cvt_pk_bf16_f32 v18, v16, v17"); E(f"ds_write_b32 v8, v18 offset:{8448+c*528+hf*256}")
                if c<15: cmul(16,17,16,17,10,11)
            for a in range(na):
                E("v_sub_f32 v19, 0, v15"); E("v_cvt_pk_bf16_f32 v18, v14, v19"); E(f"ds_write_b32 v8, v18 offset:{a*528+hf*256}")
                if a<na-1: cmul(14,15,14,15,12,13)
        E("s_waitcnt lgkmcnt(0)")
        for i in range(4): E(f"v_mov_b32 v{20+i}, 0")
        for ks in range(8):
            E(f"ds_read_b128 v[24:27], v9 offset:{ks*64}"); E(f"ds_read_b128 v[28:31], v9 offset:{8448+ks*64}")
            E("s_waitcnt lgkmcnt(0)"); E("v_mfma_f32_16x16x32_bf16 v[20:23], v[24:27], v[28:31], v[20:23]")
        E("s_nop 7"); E("s_nop 3")
        for i in range(4): E(f"v_mov_b32 v{80+bnd*4+i}, v{20+i}")
    E("v_and_b32 v3, 15, v1"); E("v_lshrrev_b32 v4, 4, v1"); E("v_lshl_add_u32 v3, v4, 6, v3"); E("v_lshl_add_u32 v3, v3, 2, s46")
    for bnd,(tb,lim) in enumerate([(0,64),(256,32),(384,32),(512,48)]):
        E(f"v_cmp_gt_u32 vcc, {lim}, v1"); E("s_and_saveexec_b64 s[54:55], vcc")
        for r in range(4): E(f"ds_write_b32 v3, v{80+bnd*4+r} offset:{(tb+16*r)*4}")
        E("s_mov_b64 exec, s[54:55]")
    E("s_waitcnt lgkmcnt(0)")
    E("s_lshl_b32 s23, s21, 12"); E(f"s_add_u32 s23, s23, {WS_KREV}")
    def idx(dst,lreg):
        E(f"v_cvt_f32_u32 v4, v{lreg}"); bf16round(4,4,5); E("v_cvt_u32_f32 v4, v4")
        E(f"v_mov_b32 v{dst}, v4")
        for thr,sh,tb in [(256,1,256),(512,2,384),(1024,3,512)]:
            E(f"v_subrev_u32 v5, {thr}, v4"); E(f"v_lshrrev_b32 v5, {sh}, v5"); E(f"v_add_u32 v5, {tb}, v5")
            E(f"v_cmp_lt_u32 vcc, {thr}, v4"); E("s_nop 1"); E(f"v_cndmask_b32 v{dst}, v{dst}, v5, vcc")
        E(f"v_lshl_add_u32 v{dst}, v{dst}, 2, s46")
    for it in range(16):
        E(f"v_lshlrev_b32 v10, 1, v1"); E(f"v_sub_u32 v10, {2047-128*it}, v10"); E("v_add_u32 v11, -1, v10")
        idx(12,10); idx(13,11)
        E("ds_read_b32 v14, v12"); E("ds_read_b32 v15, v13"); E("s_waitcnt lgkmcnt(0)")
        E("v_cvt_pk_bf16_f32 v14, v14, v15"); E(f"v_lshl_add_u32 v16, v1, 2, s23")
        E(f"buffer_store_dword v14, v16, s[16:19], 0 offen offset:{it*256}")
    E("s_load_dwordx2 s[28:29], s[0:1], 96"); E("s_waitcnt lgkmcnt(0)"); srd(8,24,4<<20)
    srd(12,28,2048)
    E("v_lshlrev_b32 v3, 5, v1"); E("buffer_load_dwordx4 v[40:43], v3, s[12:15], 0 offen"); E("buffer_load_dwordx4 v[44:47], v3, s[12:15], 0 offen offset:16")
    E("s_lshl_b32 s21, s21, 1")
    for tk in range(2):
        E(f"s_add_u32 s22, s21, {tk}"); E("s_lshl_b32 s23, s22, 11")
        E("buffer_load_dwordx4 v[20:23], v3, s[8:11], s23 offen"); E("buffer_load_dwordx4 v[24:27], v3, s[8:11], s23 offen offset:16")
        E("s_waitcnt vmcnt(0)"); E("v_mov_b32 v30, 0")
        for q in range(8):
            E(f"v_lshlrev_b32 v4, 16, v{20+q}"); E(f"v_lshlrev_b32 v5, 16, v{40+q}"); E("v_mul_f32 v4, v4, v5"); bf16round(4,4,6); E("v_add_f32 v30, v30, v4")
            E(f"v_and_b32 v4, 0xffff0000, v{20+q}"); E(f"v_and_b32 v5, 0xffff0000, v{40+q}"); E("v_mul_f32 v4, v4, v5"); bf16round(4,4,6); E("v_add_f32 v30, v30, v4")
        for sh in (1,2,4,8,16,32):
            E(f"v_xor_b32 v4, {sh}, v1"); E("v_lshlrev_b32 v4, 2, v4"); E("ds_bpermute_b32 v5, v4, v30"); E("s_waitcnt lgkmcnt(0)"); E("v_add_f32 v30, v30, v5")
        bf16round(30,30,4); E(f"v_mul_f32 v30, 0xbfb8aa3b, v30"); E("v_exp_f32 v30, v30"); E("s_nop 0"); E("v_add_f32 v30, 1.0, v30"); E("v_rcp_f32 v30, v30"); E("s_nop 0"); bf16round(30,30,4)
        E("s_lshl_b32 s22, s22, 2"); E(f"s_add_u32 s22, s22, {WS_G}"); E("v_mov_b32 v4, s22"); E("buffer_store_dword v30, v4, s[16:19], 0 offen")
import struct
def f2u(x): return struct.unpack('<I',struct.pack('<f',float(x)))[0]


def k2():
    head("k2_kernel")
    E("s_cmp_ge_u32 s2, 256"); E("s_cbranch_scc1 K2_END")
    E("s_load_dwordx2 s[24:25], s[0:1], 0"); E("s_load_dwordx2 s[26:27], s[0:1], 64"); E("s_load_dwordx2 s[28:29], s[0:1], 96"); E("s_load_dwordx2 s[42:43], s[0:1], 120")
    E("s_mov_b32 s60, 0x7fff")
    E("v_and_b32 v1, 63, v0"); E("v_lshrrev_b32 v2, 6, v0"); E("s_nop 0"); E("v_readfirstlane_b32 s20, v2")
    E("s_waitcnt lgkmcnt(0)")
    srd(16,42,WS_SZ); srd(8,24,4<<20)
    E("s_lshl_b32 s21, s2, 2"); E("s_add_u32 s21, s21, s20")
    E("s_mul_i32 s46, s20, 40960")
    E("s_lshl_b32 s22, s21, 12"); E(f"s_add_u32 s22, s22, {WS_KREV}"); E("s_add_u32 s30, s42, s22"); E("s_addc_u32 s31, s43, 0"); srd(12,30,4096)
    for it in range(5):
        E(f"v_add_u32 v3, {it*64}, v1"); E("v_cmp_gt_u32 vcc, 260, v3"); E("s_and_saveexec_b64 s[54:55], vcc")
        E("v_lshlrev_b32 v3, 4, v3")
        E("buffer_load_dwordx4 v[20:23], v3, s[12:15], 0 offen"); E("buffer_load_dwordx4 v[24:27], v3, s[12:15], 0 offen offset:16")
        E("v_add_u32 v3, s46, v3"); E("s_waitcnt vmcnt(0)")
        for j in range(8):
            if j%2==0: E(f"ds_write_b128 v3, v[{20+j//2}:{23+j//2}] offset:{j*4160}") if (j//2)%2==0 else None
            if j%2==0 and (j//2)%2==1:
                for q in range(4): E(f"v_mov_b32 v{28+q}, v{20+j//2+q}")
                E("s_nop 0"); E(f"ds_write_b128 v3, v[28:31] offset:{j*4160}")
            if j%2==1:
                for q in range(4): E(f"v_alignbyte_b32 v{28+q}, v{20+(j+1)//2+q}, v{20+(j-1)//2+q}, 2")
                E("s_nop 0"); E(f"ds_write_b128 v3, v[28:31] offset:{j*4160}")
            E("s_waitcnt lgkmcnt(0)")
        E("s_mov_b64 exec, s[54:55]")
    for q in range(4): E(f"v_mov_b32 v{28+q}, 0")
    E("v_lshl_add_u32 v3, v1, 4, s46")
    for q in range(3):
        if q<2: E(f"ds_write_b128 v3, v[28:31] offset:{33280+q*1024}")
    E("v_cmp_gt_u32 vcc, 27, v1"); E("s_and_saveexec_b64 s[54:55], vcc"); E(f"ds_write_b128 v3, v[28:31] offset:{33280+2048}"); E("s_mov_b64 exec, s[54:55]")
    E("s_lshl_b32 s23, s21, 12"); E(f"s_add_u32 s23, s23, {WS_XT}"); E("v_lshlrev_b32 v5, 4, v1")
    E("v_lshrrev_b32 v4, 2, v1"); E("v_mul_u32_u24 v4, 80, v4"); E("v_and_b32 v6, 3, v1"); E("v_lshl_add_u32 v4, v6, 4, v4"); E("v_add_u32 v4, s46, v4")
    for it in range(4): E(f"buffer_load_dwordx4 v[{64+4*it}:{67+4*it}], v5, s[16:19], s23 offen offset:{it*1024}")
    E("s_waitcnt vmcnt(0)")
    for it in range(4): E(f"ds_write_b128 v4, v[{64+4*it}:{67+4*it}] offset:{33280+(31+16*it)*80}")
    E("v_and_b32 v5, 31, v1"); E("v_lshrrev_b32 v6, 5, v1")
    E("v_mul_u32_u24 v7, 80, v5"); E("v_lshl_add_u32 v7, v6, 4, v7"); E("v_add_u32 v7, s46, v7"); E("v_add_u32 v7, 33280, v7")
    E("v_sub_u32 v8, 7, v5"); E("v_and_b32 v8, 7, v8"); E("v_mul_u32_u24 v8, 4160, v8")
    E("v_lshrrev_b32 v9, 3, v5"); E("v_sub_u32 v9, v6, v9"); E("v_add_u32 v9, 3, v9"); E("v_lshl_add_u32 v8, v9, 4, v8"); E("v_add_u32 v8, s46, v8")
    for i in range(32): E(f"v_mov_b32 v{64+i}, 0")
    E("s_waitcnt lgkmcnt(0)")
    steps=[(k,ks) for k in range(64) for ks in range(2)]
    def rd(n):
        k,ks=steps[n]; b=20+(n%3)*12
        E(f"ds_read_b128 v[{b}:{b+3}], v8 offset:{64*(63-k)+32*ks}"); E(f"ds_read_b128 v[{b+4}:{b+7}], v7 offset:{(63-k)*80+32*ks}")
        if k<32: E(f"ds_read_b128 v[{b+8}:{b+11}], v7 offset:{(31-k)*80+32*ks}")
        else: E("s_nop 0") if False else None
    cnt=lambda n: 3 if steps[n][0]<32 else 2
    rd(0); rd(1)
    for n in range(len(steps)):
        if n+2<len(steps): rd(n+2)
        pend=sum(cnt(m) for m in (n+1,n+2) if m<len(steps))
        E(f"s_waitcnt lgkmcnt({pend})"); b=20+(n%3)*12
        E(f"v_mfma_f32_32x32x16_bf16 v[80:95], v[{b}:{b+3}], v[{b+4}:{b+7}], v[80:95]")
        if steps[n][0]<32: E(f"v_mfma_f32_32x32x16_bf16 v[64:79], v[{b}:{b+3}], v[{b+8}:{b+11}], v[64:79]")
    E("s_nop 7"); E("s_nop 7")
    srd(12,26,2048); E("s_lshl_b32 s23, s21, 1"); E("v_mov_b32 v2, s23"); E("buffer_load_ushort v2, v2, s[12:15], 0 offen")
    E("s_lshl_b32 s23, s21, 12"); E(f"s_add_u32 s23, s23, {WS_A}"); E("v_lshlrev_b32 v10, 6, v5"); E("v_lshl_add_u32 v10, v6, 3, v10")
    E("v_mul_u32_u24 v11, 80, v5"); E("v_lshl_add_u32 v11, v6, 3, v11"); E("v_add_u32 v11, s46, v11")
    E("s_waitcnt vmcnt(0)"); E("v_lshlrev_b32 v2, 16, v2")
    for I in range(2):
        for g4 in range(4):
            E(f"ds_read_b64 v[12:13], v11 offset:{33280+(31+32*I)*80+g4*16}"); E("s_waitcnt lgkmcnt(0)")
            for e in range(4):
                x=64+I*16+g4*4+e; bf16round(x,x,4)
                E(f"v_and_b32 v3, 0xffff0000, v{12+e//2}") if e%2 else E(f"v_lshlrev_b32 v3, 16, v{12+e//2}")
                E("v_mul_f32 v3, v3, v2"); bf16round(3,3,4); E(f"v_add_f32 v{x}, v{x}, v3"); bf16round(x,x,4)
            x=64+I*16+g4*4
            E(f"v_lshrrev_b32 v14, 16, v{x}"); E(f"v_or_b32 v14, v{x+1}, v14"); E(f"v_lshrrev_b32 v15, 16, v{x+2}"); E(f"v_or_b32 v15, v{x+3}, v15")
            E(f"buffer_store_dwordx2 v[14:15], v10, s[16:19], s23 offen offset:{I*2048+g4*16}"); E("s_nop 1")
    E("s_cmp_ge_u32 s2, 32"); E("s_cbranch_scc1 K2_END")
    E("s_mov_b32 s21, s2"); E("s_mul_i32 s22, s21, 4224"); E(f"s_add_u32 s22, s22, {WS_KVP}"); E("s_lshl_b32 s23, s21, 12"); E(f"s_add_u32 s23, s23, {WS_KVT}")
    for i in range(5):
        E(f"v_add_u32 v3, {256*i}, v0")
        if i==4: E("v_and_b32 v3, 31, v0"); E("v_add_u32 v3, 1024, v3")
        E("v_lshl_add_u32 v4, v3, 2, s22")
        for m in range(8): E(f"s_mov_b32 s30, {m*32*4224}"); E(f"buffer_load_dword v{20+m}, v4, s[16:19], s30 offen")
        E("s_waitcnt vmcnt(0)")
        for m in range(1,8): E(f"v_add_f32 v20, v20, v{20+m}")
        bf16round(20,20,5)
        if i<4:
            E("v_lshrrev_b32 v5, 5, v3"); E("v_and_b32 v6, 31, v3"); E("v_lshl_add_u32 v5, v6, 5, v5"); E("v_lshl_add_u32 v5, v5, 1, s23")
            E("buffer_store_short_d16_hi v20, v5, s[16:19], 0 offen")
        else:
            for j in range(4):
                E(f"v_lshrrev_b32 v5, 5, v0"); E(f"v_add_u32 v5, {8*j}, v5"); E("v_and_b32 v6, 27, v5"); E("v_cmp_eq_u32 vcc, 0, v6"); E("s_nop 1"); E("v_cndmask_b32 v7, 0, v20, vcc")
                E(f"v_add_u32 v6, {256*j}, v0"); E("v_lshl_add_u32 v6, v6, 1, s23"); E("buffer_store_short_d16_hi v7, v6, s[16:19], 0 offen offset:2048")
    E("K2_END:"); E("s_endpgm")

def k3():
    head("k3_kernel")
    E("s_cmp_ge_u32 s2, 256"); E("s_cbranch_scc1 K3_END")
    E("s_load_dwordx2 s[24:25], s[0:1], 88"); E("s_load_dwordx2 s[26:27], s[0:1], 104"); E("s_load_dwordx2 s[42:43], s[0:1], 120")
    E("s_mov_b32 s60, 0x7fff"); E("s_mov_b32 s61, 0x358637bd")
    E("v_and_b32 v1, 63, v0"); E("v_lshrrev_b32 v2, 6, v0"); E("s_nop 0"); E("v_readfirstlane_b32 s20, v2")
    E("s_waitcnt lgkmcnt(0)")
    srd(16,42,WS_SZ); srd(8,24,2<<20); srd(12,26,4<<20)
    E("s_and_b32 s21, s2, 15"); E("s_lshr_b32 s22, s2, 4")
    E("s_lshl_b32 s23, s20, 6"); E("v_add_u32 v3, s23, v1")
    E("v_lshrrev_b32 v4, 3, v3"); E("v_and_b32 v5, 7, v3"); E("v_lshlrev_b32 v4, 11, v4"); E("v_lshl_add_u32 v8, v5, 4, v4"); E("s_lshl_b32 s23, s21, 7"); E("v_add_u32 v8, s23, v8")
    E("v_and_b32 v5, 31, v1"); E("v_lshrrev_b32 v6, 5, v1")
    E("v_lshlrev_b32 v10, 6, v5"); E("v_lshl_add_u32 v10, v6, 4, v10"); E(f"v_add_u32 v10, {WS_KVT}, v10")
    E("s_lshl_b32 s23, s22, 7"); E("s_lshl_b32 s30, s20, 5"); E("s_add_u32 s23, s23, s30")
    E("v_add_u32 v11, s23, v5"); E("v_lshlrev_b32 v11, 6, v11"); E("v_lshl_add_u32 v11, v6, 4, v11")
    E("v_lshlrev_b32 v3, 2, v6"); E("v_bfe_u32 v4, v1, 2, 2"); E("v_add_u32 v3, v3, v4"); E("v_bfe_u32 v4, v1, 4, 1"); E("v_lshlrev_b32 v4, 5, v4"); E("v_and_b32 v7, 3, v1"); E("v_lshl_add_u32 v4, v7, 3, v4"); E("v_lshl_add_u32 v12, v3, 7, v4")
    for i in range(32): E(f"v_mov_b32 v{128+i}, 0")
    def loads(h,R):
        E(f"s_lshl_b32 s32, s{h}, 12"); E(f"s_lshl_b32 s33, s{h}, 17"); E(f"s_lshl_b32 s31, s{h}, 16")
        E("s_lshl_b32 s30, s20, 10"); E("s_add_u32 m0, s30, s51"); E("s_nop 0"); E("buffer_load_dwordx4 v8, s[8:11], s31 offen lds")
        for q in range(2):
            E(f"buffer_load_dwordx4 v[{R+4*q}:{R+3+4*q}], v10, s[16:19], s32 offen offset:{32*q}")
            E(f"buffer_load_dwordx4 v[{R+8+4*q}:{R+11+4*q}], v10, s[16:19], s32 offen offset:{2048+32*q}")
            E(f"buffer_load_dwordx4 v[{R+16+4*q}:{R+19+4*q}], v11, s[16:19], s33 offen offset:{32*q}")
    E("s_mov_b32 s51, 0"); E("s_mov_b32 s52, 0"); loads(52,20); E("s_mov_b32 s51, 4096"); E("s_mov_b32 s53, 1"); loads(53,160); E("s_mov_b32 s50, 0")
    E("K3_LOOP:")
    for R in (20,160):
        for i in range(32): E(f"v_mov_b32 v{64+i}, 0")
        E("s_waitcnt vmcnt(7)")
        for q in range(2):
            E(f"v_mfma_f32_32x32x16_bf16 v[64:79], v[{R+4*q}:{R+3+4*q}], v[{R+16+4*q}:{R+19+4*q}], v[64:79]")
            E(f"v_mfma_f32_32x32x16_bf16 v[80:95], v[{R+8+4*q}:{R+11+4*q}], v[{R+16+4*q}:{R+19+4*q}], v[80:95]")
        E("s_barrier")
        E("s_add_u32 s51, s51, 4096"); E("s_cmp_eq_u32 s51, 12288"); E("s_cselect_b32 s51, 0, s51")
        E("s_add_u32 s53, s52, 2"); E("s_min_u32 s53, s53, 31"); loads(53,R)
        E("v_add_u32 v13, s50, v12")
        for m in range(2):
            for nt in range(2):
                b=104+(m*2+nt)*4
                E(f"ds_read_b64_tr_b16 v[{b}:{b+1}], v13 offset:{(16*m)*128+nt*64}"); E(f"ds_read_b64_tr_b16 v[{b+2}:{b+3}], v13 offset:{(16*m+8)*128+nt*64}")
        E("s_nop 7")
        bf16round(80,80,2); E("v_add_f32 v80, s61, v80"); bf16round(80,80,2); E("v_rcp_f32 v80, v80"); E("s_nop 0")
        for r in range(16): bf16round(64+r,64+r,2); E(f"v_mul_f32 v{64+r}, v{64+r}, v80")
        for i in range(8): E(f"v_cvt_pk_bf16_f32 v{96+i}, v{64+2*i}, v{65+2*i}")
        E("s_waitcnt lgkmcnt(0)")
        for m in range(2):
            for nt in range(2):
                a=128+nt*16; b=104+(m*2+nt)*4; E(f"v_mfma_f32_32x32x16_bf16 v[{a}:{a+15}], v[{96+4*m}:{99+4*m}], v[{b}:{b+3}], v[{a}:{a+15}]")
        E("s_add_u32 s50, s50, 4096"); E("s_cmp_eq_u32 s50, 12288"); E("s_cselect_b32 s50, 0, s50")
        E("s_add_u32 s52, s52, 1")
    E("s_cmp_lt_u32 s52, 32"); E("s_cbranch_scc1 K3_LOOP")
    E("s_waitcnt vmcnt(0)")
    E("v_lshlrev_b32 v3, 2, v6"); E("v_add_u32 v3, s23, v3"); E("v_lshlrev_b32 v4, 2, v3"); E(f"v_add_u32 v4, {WS_G}, v4")
    E("v_lshlrev_b32 v3, 11, v3"); E("v_lshl_add_u32 v3, v5, 1, v3"); E("s_lshl_b32 s30, s21, 7"); E("v_add_u32 v3, s30, v3")
    for r in range(16):
        row=(r//4)*8+r%4
        E(f"buffer_load_dword v{20+r}, v4, s[16:19], 0 offen offset:{row*4}"); E(f"s_mov_b32 s30, {WS_A+row*2048}")
    E("s_lshl_b32 s30, s21, 6"); E("v_add_u32 v7, s30, v5"); E("v_lshlrev_b32 v7, 12, v7"); E("v_lshl_add_u32 v7, v6, 3, v7"); E("s_lshl_b32 s30, s23, 1"); E(f"s_add_u32 s30, s30, {WS_A}")
    for nt in range(2):
        for g4 in range(4): E(f"s_add_u32 s31, s30, {nt*32*4096}"); E(f"buffer_load_dwordx2 v[{64+nt*8+g4*2}:{65+nt*8+g4*2}], v7, s[16:19], s31 offen offset:{g4*16}")
    E("s_waitcnt vmcnt(0)")
    for r in range(16):
        row=(r//4)*8+r%4; E(f"s_mov_b32 s31, {row*2048}")
        E(f"v_sub_f32 v40, 1.0, v{20+r}"); bf16round(40,40,2)
        for nt in range(2):
            x=128+nt*16+r; a=41; src=64+nt*8+(r//4)*2+(r%4)//2
            E(f"v_and_b32 v{a}, 0xffff0000, v{src}") if r%2 else E(f"v_lshlrev_b32 v{a}, 16, v{src}")
            E(f"v_mul_f32 v{a}, v{20+r}, v{a}"); bf16round(a,a,2)
            bf16round(x,x,2); E(f"v_mul_f32 v{x}, v40, v{x}"); bf16round(x,x,2); E(f"v_add_f32 v{x}, v{x}, v{a}"); bf16round(x,x,2)
            E(f"buffer_store_short_d16_hi v{x}, v3, s[12:15], s31 offen offset:{nt*64}")
    E("K3_END:"); E("s_endpgm")

def desc(name,vg):
    E('.p2align 6'); E(f".amdhsa_kernel {name}")
    for l in [f".amdhsa_next_free_vgpr {vg}",".amdhsa_next_free_sgpr 102",f".amdhsa_accum_offset {(vg+3)//4*4}",".amdhsa_group_segment_fixed_size 0",".amdhsa_kernarg_size 128",".amdhsa_user_sgpr_count 2",".amdhsa_user_sgpr_kernarg_segment_ptr 1",".amdhsa_system_sgpr_workgroup_id_x 1"]: E("  "+l)
    E(".end_amdhsa_kernel")
if __name__=='__main__':
    E("; @launch kernel=k1_kernel grid=(512,1,1) block=(256,1,1) lds=69632")
    E("; @launch kernel=k2_kernel grid=(256,1,1) block=(256,1,1) lds=163840")
    E("; @launch kernel=k3_kernel grid=(256,1,1) block=(256,1,1) lds=12288")
    E('.amdgcn_target "amdgcn-amd-amdhsa--gfx950"'); E(".text")
    k1(); k2(); k3()
    E('.section .rodata,"a"'); desc("k1_kernel",160); desc("k2_kernel",96); desc("k3_kernel",184)
    open(sys.argv[1],'w').write("\n".join(out)+"\n")
```
